```python
import torch

def _softmax(x, axis=-1):
    return torch.softmax(x, dim=axis)
def _gelu(x):
    return torch.nn.functional.gelu(x, approximate="tanh")
def _silu(x):
    return torch.nn.functional.silu(x)
def _sigmoid(x):
    return torch.sigmoid(x)
def _layernorm(x, axis=-1, eps=1e-5):
    m = x.mean(dim=axis, keepdim=True)
    v = x.var(dim=axis, keepdim=True, unbiased=False)
    return (x - m) / torch.sqrt(v + eps)
def _scatter_add(tgt, idx, src, axis=0):
    return tgt.clone().index_add_(axis, idx, src)
def _segment_sum(src, seg, n):
    out = torch.zeros((n,) + src.shape[1:], dtype=src.dtype)
    return out.index_add_(0, seg, src)
def _pad(x, pw):
    flat = tuple(v for pair in reversed(pw) for v in pair)
    return torch.nn.functional.pad(x, flat)

kernel_name = 'gated_mix__mha_block__glu_gated_bilinear__prompt'

def setup_inputs():

    _w = (lambda a: (lambda t: t.to(torch.bfloat16) if t.is_floating_point() else t)(torch.as_tensor(a)))
    def _A_setup():
        B, S, D, H = 1, 2048, 512, 32
        return {
            "x": _w((lambda *s: torch.randn(*s, dtype=torch.bfloat16) * 0.05)(B, S, D)),
            "wqkv": _w((lambda *s: torch.randn(*s, dtype=torch.bfloat16) * 0.8)(D, 3 * D)),
            "wo": _w((lambda *s: torch.randn(*s, dtype=torch.bfloat16) * 0.05)(D, D)),
        }
    _A_in = _A_setup()

    def _B_setup():
        B, S, D, F = 1, 2048, 512, 1792
        return {
            "x": _w((lambda *s: torch.randn(*s, dtype=torch.bfloat16) * 0.05)(B, S, D)),
            "w_gate": _w((lambda *s: torch.randn(*s, dtype=torch.bfloat16) * 1.6)(D, F) * (D ** -0.5)),
            "w_up": _w((lambda *s: torch.randn(*s, dtype=torch.bfloat16) * 1.6)(D, F) * (D ** -0.5)),
            "w_down": _w((lambda *s: torch.randn(*s, dtype=torch.bfloat16) * 1.6)(F, D) * (F ** -0.5)),
        }
    _B_in = _B_setup()

    return {
        "A_x": _A_in["x"],
        "A_wqkv": _A_in["wqkv"],
        "A_wo": _A_in["wo"],
        "B_x": _B_in["x"],
        "B_w_gate": _B_in["w_gate"],
        "B_w_up": _B_in["w_up"],
        "B_w_down": _B_in["w_down"],
        "gate_w": _w((lambda *s: torch.randn(*s, dtype=torch.bfloat16) * 0.05)(512) * 16.0),
    }

def reference(A_x, A_wqkv, A_wo, B_x, B_w_gate, B_w_up, B_w_down, gate_w):
    def _A_ref(x, wqkv, wo):
        B, S, D = x.shape
        H = 32
        Dh = D // H
        qkv = (lambda x, *d: x.permute(*d))((x @ wqkv).reshape(B, S, 3, H, Dh), 2, 0, 3, 1, 4)
        q, k, v = qkv[0], qkv[1], qkv[2]
        scores = torch.einsum("bhqd,bhkd->bhqk", q, k) * (Dh ** -0.5)
        p = _softmax(scores, axis=-1)
        o = torch.einsum("bhqk,bhkd->bhqd", p, v)
        return (lambda x, *d: x.permute(*d))(o, 0, 2, 1, 3).reshape(B, S, D) @ wo

    def _B_ref(x, w_gate, w_up, w_down):
        g = torch.einsum("bsd,df->bsf", x, w_gate)
        u = torch.einsum("bsd,df->bsf", x, w_up)
        h = g * u
        return torch.einsum("bsf,fd->bsd", h, w_down)

    x = A_x
    g = _sigmoid((x * gate_w).sum(-1, keepdims=True))
    a = _A_ref(x, A_wqkv, A_wo)
    b = _B_ref(x, B_w_gate, B_w_up, B_w_down)
    return g * a + (1 - g) * b
```

```python
import re

TRANS = ("v_exp_f32", "v_rcp_f32", "v_log_f32", "v_rsq_f32", "v_sqrt_f32", "v_sin_f32", "v_cos_f32", "v_exp_f16")

def parse_regs(tok):
    tok = tok.strip()
    out = set()
    m = re.fullmatch(r"-?\|?([vas])(\d+)\|?", tok)
    if m:
        out.add((m.group(1), int(m.group(2))))
        return out
    m = re.fullmatch(r"-?\|?([vas])\[(\d+):(\d+)\]\|?", tok)
    if m:
        for i in range(int(m.group(2)), int(m.group(3)) + 1):
            out.add((m.group(1), i))
        return out
    if tok in ("vcc", "vcc_lo", "vcc_hi"):
        out.add(("s", 106)); out.add(("s", 107))
    if tok in ("exec", "exec_lo", "exec_hi"):
        out.add(("s", 126)); out.add(("s", 127))
    if tok == "m0":
        out.add(("s", 124))
    return out

class Ins:
    __slots__ = ("text", "mn", "ops", "dst", "src", "kind", "states", "label", "target", "passes", "srcc", "dpp", "wide", "lds")
    def __init__(self, text):
        self.text = text
        t = text.split(";")[0].strip()
        self.label = None; self.target = None
        self.dst = set(); self.src = set(); self.srcc = set()
        self.kind = "other"; self.states = 1; self.passes = 0; self.dpp = False; self.wide = False; self.lds = False
        if not t:
            self.kind = "none"; self.states = 0; self.mn = ""; return
        if t.endswith(":"):
            self.kind = "label"; self.label = t[:-1]; self.states = 0; self.mn = ""; return
        if t.startswith("."):
            self.kind = "none"; self.states = 0; self.mn = ""; return
        parts = t.split(None, 1)
        self.mn = mn = parts[0]
        rest = parts[1] if len(parts) > 1 else ""
        raw = [x.strip() for x in rest.split(",")] if rest else []
        ops = []
        mods = []
        for i, x in enumerate(raw):
            sp = x.split()
            if not sp: continue
            ops.append(sp[0])
            mods += sp[1:]
        self.ops = ops
        alltext = rest
        if mn == "s_nop":
            self.kind = "nop"; self.states = int(ops[0], 0) + 1; return
        if mn.startswith("s_cbranch") or mn == "s_branch":
            self.kind = "branch"; self.target = ops[0]; return
        if mn.startswith("v_mfma"):
            self.kind = "mfma"
            self.passes = 8 if "32x32x16" in mn else 4
            self.dst = parse_regs(ops[0])
            self.src = parse_regs(ops[1]) | parse_regs(ops[2])
            self.srcc = parse_regs(ops[3])
            return
        if mn.startswith("v_"):
            self.kind = "trans" if any(mn.startswith(x) for x in TRANS) else "valu"
            if "dpp" in mn or "row_" in alltext or "quad_perm" in alltext or "wave_" in alltext:
                self.dpp = True
            if mn.startswith("v_permlane32_swap") or mn.startswith("v_permlane16_swap") or mn.startswith("v_swap"):
                self.dst = parse_regs(ops[0]) | parse_regs(ops[1]); self.src = set(self.dst); return
            if mn.startswith("v_cmp"):
                self.dst = parse_regs(ops[0])
                for o in ops[1:]: self.src |= parse_regs(o)
                if mn.startswith("v_cmpx"): self.dst |= parse_regs("exec")
                return
            self.dst = parse_regs(ops[0])
            k = 1
            if mn.startswith(("v_add_co", "v_sub_co", "v_addc_co", "v_subb_co", "v_subrev_co")):
                self.dst |= parse_regs(ops[1]); k = 2
            for o in ops[k:]: self.src |= parse_regs(o)
            if mn.startswith(("v_fmac", "v_dot2c", "v_mac")) or self.dpp or "sdwa" in mn:
                self.src |= parse_regs(ops[0])
            if mn.startswith("v_cndmask") and len(ops) == 3: self.src |= parse_regs("vcc")
            return
        if mn.startswith(("buffer_", "global_")):
            self.kind = "vmem"
            islds = (" lds" in " " + alltext) or "_lds_" in mn
            self.lds = islds
            if "load" in mn and not islds:
                self.dst = parse_regs(ops[0])
                for o in ops[1:]: self.src |= parse_regs(o)
            elif "atomic" in mn:
                for o in ops: self.src |= parse_regs(o)
                if "sc0" in alltext: self.dst = parse_regs(ops[0])
            else:
                for o in ops: self.src |= parse_regs(o)
                if "store" in mn and ("x3" in mn or "x4" in mn):
                    self.wide = True
            if islds: self.src |= parse_regs("m0")
            return
        if mn.startswith("ds_"):
            self.kind = "ds"
            if "read" in mn or "rtn" in mn or "permute" in mn or "swizzle" in mn:
                self.dst = parse_regs(ops[0])
                for o in ops[1:]: self.src |= parse_regs(o)
            else:
                for o in ops: self.src |= parse_regs(o)
            return
        if mn.startswith("s_"):
            self.kind = "salu"
            if mn.startswith(("s_cmp", "s_waitcnt", "s_barrier", "s_endpgm", "s_sleep", "s_setprio", "s_bitcmp")):
                for o in ops: self.src |= parse_regs(o)
            else:
                if ops: self.dst = parse_regs(ops[0])
                for o in ops[1:]: self.src |= parse_regs(o)
                if "saveexec" in mn: self.dst |= parse_regs("exec")
            return
        raise ValueError("unknown instr " + text)

def vonly(s): return {r for r in s if r[0] in "va"}
def sonly(s): return {r for r in s if r[0] == "s"}

def need(p, c):
    n = 0
    pv = p.kind in ("valu", "trans")
    cv = c.kind in ("valu", "trans")
    if pv:
        d = vonly(p.dst)
        if c.kind == "mfma" and d & (c.src | c.srcc): n = max(n, 2)
        if p.kind == "trans" and c.kind == "valu" and d & c.src: n = max(n, 1)
        if p.kind == "trans" and c.kind in ("vmem", "ds") and d & c.src: n = max(n, 1)
        if cv and c.dpp and d & c.src: n = max(n, 2)
        if cv and c.mn.startswith("v_permlane") and d & c.src: n = max(n, 2)
        if cv and c.mn.startswith(("v_readfirstlane", "v_readlane")) and d & c.src: n = max(n, 1)
        if p.mn.startswith("v_dot") and d & (c.src | c.dst | c.srcc):
            if not (c.mn == p.mn and not (d & (parse_regs(c.ops[1]) | parse_regs(c.ops[2])))): n = max(n, 3)
        if ("sdwa" in p.mn or "op_sel" in p.text) and cv and d & (c.src | c.dst): n = max(n, 1)
        sd = sonly(p.dst)
        if sd:
            if c.kind == "vmem" and sd & c.src: n = max(n, 5)
            if cv and sd & c.src: n = max(n, 4 if c.mn.startswith(("v_readlane", "v_writelane")) else 2)
            if ("s", 126) in sd:
                if c.kind == "mfma": n = max(n, 4)
                if cv and (c.dpp): n = max(n, 5)
                if cv and c.mn.startswith(("v_readfirstlane", "v_readlane", "v_permlane", "v_writelane")): n = max(n, 4)
    if p.kind == "mfma":
        big = 12 if p.passes == 8 else 8
        if c.kind == "mfma":
            if p.dst & c.src: n = max(n, big)
            if p.dst & c.srcc and not (p.dst == c.srcc and p.passes == c.passes): n = max(n, big - 2)
            if p.dst & c.dst and not (p.dst == c.dst and p.passes == c.passes and c.srcc == p.dst):
                if not (p.dst == c.dst and p.passes == c.passes): n = max(n, big)
        elif c.kind in ("valu", "trans", "vmem", "ds"):
            if p.dst & (c.src | c.dst): n = max(n, big)
            if cv and p.srcc & c.dst: n = max(n, 7 if p.passes == 8 else 3)
    if p.kind == "vmem" and p.wide:
        data = parse_regs(p.ops[0]) if p.mn.startswith("buffer") else parse_regs(p.ops[1])
        if data & c.dst: n = max(n, 2 if cv else 1)
    if p.kind == "salu" and ("s", 124) in p.dst and c.kind == "vmem" and c.lds: n = max(n, 1)
    return n

WIN = 16
class Asm:
    def __init__(self):
        self.ins = []
    def __call__(self, text):
        for line in text.split("\n"):
            line = line.strip()
            if not line: continue
            self.emit(Ins(line))
    def emit(self, c):
        if c.states > 0 and c.kind != "nop":
            dist = 0; pad = 0
            for p in reversed(self.ins):
                if dist >= 13: break
                if p.states == 0: continue
                n = need(p, c)
                if n > dist: pad = max(pad, n - dist)
                dist += p.states
            while pad > 0:
                k = min(pad, 8)
                self.ins.append(Ins(f"s_nop {k-1}")); pad -= k
        self.ins.append(c)
    def check_branches(self):
        labels = {x.label: i for i, x in enumerate(self.ins) if x.kind == "label"}
        for i, b in enumerate(self.ins):
            if b.kind == "branch" and b.target in labels:
                q = labels[b.target]
                pre = [x for x in self.ins[max(0, i - 40):i + 1] if x.states > 0]
                post = [x for x in self.ins[q:q + 40] if x.states > 0]
                for k, c in enumerate(post):
                    dist = sum(x.states for x in post[:k])
                    if dist >= 13: break
                    for p in reversed(pre):
                        if dist >= 13: break
                        if need(p, c) > dist:
                            raise RuntimeError(f"hazard across branch {b.text}: {p.text} -> {c.text} dist {dist}")
                        dist += p.states
    def text(self):
        self.check_branches()
        out = []
        for x in self.ins:
            out.append(x.text if x.kind in ("label", "none") else "    " + x.text)
        return "\n".join(out) + "\n"

def vr(b, n=1, p="v"):
    return f"{p}{b}" if n == 1 else f"{p}[{b}:{b+n-1}]"
def sr(b, n=1):
    return f"s{b}" if n == 1 else f"s[{b}:{b+n-1}]"
```

```python
import sys
from asmlib import *

WS_QF = 0x000000; WS_KF = 0x200000; WS_VF = 0x400000; WS_OF = 0x600000
WS_XF = 0x800000; WS_HF = 0xA00000; WS_GP = 0x1100000; WS_KM = 0x1140000
WS_SIZE = 0x2000000
QSCALE = 0x3eb8aa3b

def srd(a, sbase, sptr, size):
    a(f"s_mov_b32 s{sbase}, s{sptr}")
    a(f"s_mov_b32 s{sbase+1}, s{sptr+1}")
    a(f"s_mov_b32 s{sbase+2}, {hex(size)}")
    a(f"s_mov_b32 s{sbase+3}, 0x00020000")

def header(a, name):
    a(f".globl {name}")
    a(".p2align 8")
    a(f".type {name},@function")
    a(f"{name}:")

def kd(name, vgpr, sgpr=102):
    acc = (vgpr + 3) // 4 * 4
    return f""".p2align 6
.amdhsa_kernel {name}
  .amdhsa_next_free_vgpr {vgpr}
  .amdhsa_next_free_sgpr {sgpr}
  .amdhsa_accum_offset {acc}
  .amdhsa_group_segment_fixed_size 0
  .amdhsa_kernarg_size 88
  .amdhsa_user_sgpr_count 2
  .amdhsa_user_sgpr_kernarg_segment_ptr 1
  .amdhsa_system_sgpr_workgroup_id_x 1
.end_amdhsa_kernel
"""

def gen_k1(a):
    N = "k1_kernel"
    header(a, N)
    a("s_cmp_ge_u32 s2, 256")
    a("s_cbranch_scc1 K1_END")
    a("s_load_dwordx4 s[4:7], s[0:1], 0")
    a("s_load_dwordx2 s[8:9], s[0:1], 56")
    a("s_load_dwordx2 s[10:11], s[0:1], 80")
    a("v_lshrrev_b32 v2, 6, v0")
    a("v_and_b32 v1, 63, v0")
    a("v_readfirstlane_b32 s34, v2")
    a("s_and_b32 s42, s2, 7")
    a("s_lshr_b32 s43, s2, 3")
    a("s_and_b32 s32, s42, 3")
    a("s_lshl_b32 s32, s32, 2")
    a("s_and_b32 s44, s43, 3")
    a("s_add_u32 s32, s32, s44")
    a("s_lshr_b32 s33, s42, 2")
    a("s_lshl_b32 s33, s33, 3")
    a("s_lshr_b32 s44, s43, 2")
    a("s_add_u32 s33, s33, s44")
    a("s_lshl_b32 s44, s32, 2")
    a("s_add_u32 s44, s44, s34")
    a("s_lshl_b32 s35, s44, 15")
    a("s_add_u32 s36, s35, 8192")
    a("s_add_u32 s37, s35, 16384")
    a("s_add_u32 s38, s35, 24576")
    a("s_mul_i32 s39, s34, 49152")
    a("s_mul_i32 s45, s33, 192")
    a("s_add_u32 s39, s39, s45")
    a("s_mul_i32 s40, s34, 3072")
    a("s_lshr_b32 s41, s33, 1")
    a("s_lshl_b32 s46, s33, 6")
    a("v_lshrrev_b32 v18, 3, v1")
    a("v_and_b32 v19, 7, v1")
    a("v_lshlrev_b32 v2, 10, v18")
    a("v_lshl_add_u32 v2, v19, 4, v2")
    for j in range(3):
        a(f"v_add_u32 v20, {64*j}, v1")
        a("v_mul_u32_u24 v21, 0xaaab, v20")
        a("v_lshrrev_b32 v21, 19, v21")
        a("v_mul_u32_u24 v22, 12, v21")
        a("v_sub_u32 v22, v20, v22")
        a("v_mul_u32_u24 v21, 0xc00, v21")
        a(f"v_lshl_add_u32 v{3+j}, v22, 4, v21")
    a("v_lshrrev_b32 v17, 5, v1")
    a("v_lshlrev_b32 v23, 4, v17")
    a("s_waitcnt lgkmcnt(0)")
    srd(a, 16, 4, 0x200000)
    srd(a, 20, 6, 0x180000)
    srd(a, 24, 8, 1024)
    srd(a, 28, 10, WS_SIZE)
    XS = 128; ACC = 32; FR = 80; GW = 24
    first = True
    for c in range(8):
        for i in range(4):
            a(f"buffer_load_dwordx4 {vr(XS + (c*4+i)*4, 4)}, v2, s[16:19], s{35+i} offen offset:{c*128}")
        for j in range(3):
            a(f"s_add_u32 m0, s40, {c*12288 + j*1024}")
            a(f"buffer_load_dwordx4 v{3+j}, s[20:23], s39 offen lds")
        if c < 7:
            a("s_add_u32 s39, s39, 196608")
        if c == 0:
            a(f"buffer_load_dwordx4 {vr(GW,4)}, v23, s[24:27], s46 offen")
            a(f"buffer_load_dwordx4 {vr(GW+4,4)}, v23, s[24:27], s46 offen offset:32")
    a("s_lshl_b32 s45, s34, 13")
    a("s_add_u32 s45, s45, 98304")
    a("v_lshrrev_b32 v20, 4, v1")
    a("v_xor_b32 v20, v19, v20")
    a("v_lshlrev_b32 v20, 4, v20")
    a("v_lshl_add_u32 v20, v18, 7, v20")
    a("v_add_u32 v6, s45, v20")
    a("v_xor_b32 v7, 64, v6")
    a("v_and_b32 v20, 31, v1")
    a("v_bfe_u32 v21, v20, 1, 3")
    a("v_xor_b32 v21, v21, v17")
    a("v_lshlrev_b32 v21, 4, v21")
    a("v_lshl_add_u32 v21, v20, 7, v21")
    a("v_add_u32 v8, s45, v21")
    a("v_xor_b32 v9, 32, v8")
    a("v_xor_b32 v10, 64, v8")
    a("v_xor_b32 v11, 96, v8")
    a("s_and_b32 s47, s33, 1")
    a("s_lshl_b32 s47, s47, 6")
    a("v_xor_b32 v14, s47, v8")
    a("v_xor_b32 v15, 32, v14")
    a("v_bfe_u32 v20, v1, 2, 2")
    a("v_lshl_add_u32 v20, v17, 3, v20")
    a("v_mul_u32_u24 v20, 192, v20")
    a("v_bfe_u32 v21, v1, 4, 1")
    a("v_lshl_add_u32 v20, v21, 5, v20")
    a("v_and_b32 v21, 3, v1")
    a("v_lshl_add_u32 v12, v21, 3, v20")
    a("v_add_u32 v13, 0xc000, v12")
    a("v_lshlrev_b32 v16, 4, v1")
    a("v_bfe_u32 v20, v1, 4, 1")
    a("v_lshlrev_b32 v20, 16, v20")
    a("v_lshl_add_u32 v20, v17, 8, v20")
    a("v_and_b32 v21, 15, v1")
    a("v_lshl_add_u32 v18, v21, 4, v20")
    a("s_mul_i32 s48, s33, 3")
    a("s_lshl_b32 s49, s44, 10")
    a("s_lshl_b32 s50, s44, 15")
    a("s_lshl_b32 s51, s33, 11")
    a("s_add_u32 s50, s50, s51")
    a(f"s_add_u32 s50, s50, {hex(WS_XF)}")
    a("s_lshl_b32 s51, s33, 13")
    a("s_lshl_b32 s52, s44, 7")
    a("s_add_u32 s51, s51, s52")
    a(f"s_add_u32 s51, s51, {hex(WS_GP)}")
    a("v_and_b32 v19, 31, v1")
    a("v_lshlrev_b32 v19, 2, v19")
    a("s_cmp_ge_u32 s33, 11")
    a("s_cbranch_scc1 K1_VVV")
    a("s_cmp_eq_u32 s33, 10")
    a("s_cbranch_scc1 K1_TTV")

    def E(c, tag):
        a(f"s_waitcnt vmcnt({7*(7-c)})")
        for i in range(4):
            a(f"ds_write_b128 v{6+(i&1)}, {vr(XS+(c*4+i)*4,4)} offset:{(c&1)*4096 + i*1024}")
        a("s_barrier")
    def XFblock(c, tag):
        T = XS
        lab = f"K1_{tag}_XF{c}"
        a(f"s_cmp_eq_u32 s41, {c}")
        a(f"s_cbranch_scc0 {lab}")
        a(f"ds_read_b128 {vr(T,4)}, v14 offset:{(c&1)*4096}")
        a(f"ds_read_b128 {vr(T+4,4)}, v15 offset:{(c&1)*4096}")
        a("s_waitcnt lgkmcnt(0)")
        a(f"buffer_store_dwordx4 {vr(T,4)}, v16, s[28:31], s50 offen")
        a(f"buffer_store_dwordx4 {vr(T+4,4)}, v16, s[28:31], s50 offen offset:1024")
        a(f"v_dot2_f32_bf16 v{T+8}, v{T}, v{GW}, 0")
        for i in range(1, 8):
            a(f"v_dot2_f32_bf16 v{T+8}, v{T+i}, v{GW+i}, v{T+8}")
        a(f"v_mov_b32 v{T+9}, v{T+8}")
        a(f"v_permlane32_swap_b32 v{T+8}, v{T+9}")
        a(f"v_add_f32 v{T+8}, v{T+8}, v{T+9}")
        a("s_mov_b64 exec, 0xffffffff")
        a(f"buffer_store_dword v{T+8}, v19, s[28:31], s51 offen")
        a("s_mov_b64 exec, -1")
        a(f"{lab}:")
    def R(s):
        f = FR + 16 * (s % 3)
        c = s // 4
        a(f"ds_read_b128 {vr(f,4)}, v{8 + s%4} offset:{(c&1)*4096}")
        base = 12 if s < 16 else 13
        for j in range(3):
            off = (s % 16) * 3072 + j * 64
            a(f"ds_read_b64_tr_b16 {vr(f+4+4*j,2)}, v{base} offset:{off}")
            a(f"ds_read_b64_tr_b16 {vr(f+6+4*j,2)}, v{base} offset:{off+768}")
    def M(s, pat):
        f = FR + 16 * (s % 3)
        for j in range(3):
            acc = vr(ACC + 16*j, 16)
            c = "0" if s == 0 else acc
            if pat[j] == "T":
                a(f"v_mfma_f32_32x32x16_bf16 {acc}, {vr(f+4+4*j,4)}, {vr(f,4)}, {c}")
            else:
                a(f"v_mfma_f32_32x32x16_bf16 {acc}, {vr(f,4)}, {vr(f+4+4*j,4)}, {c}")

    for pat in ("TTT", "TTV", "VVV"):
        a(f"K1_{pat}:")
        E(0, pat); R(0); R(1)
        for s in range(32):
            n = 0
            if s + 2 < 32:
                if (s + 2) % 4 == 0:
                    E((s + 2) // 4, pat); n += 4
                R(s + 2); n += 7
            if s + 1 < 32: n += 7
            a(f"s_waitcnt lgkmcnt({min(n,15)})")
            M(s, pat)
            if s % 4 == 1:
                XFblock(s // 4, pat)
        for j in range(3):
            A = ACC + 16 * j
            P = FR + 16 * j
            a(f"s_add_u32 s52, s48, {j}")
            a("s_lshl_b32 s53, s52, 17")
            a("s_add_u32 s53, s53, s49")
            if pat[j] == "V":
                for i in range(8):
                    a(f"v_cvt_pk_bf16_f32 v{P+i}, v{A+2*i}, v{A+2*i+1}")
                a(f"buffer_store_dwordx4 {vr(P,4)}, v18, s[28:31], s53 offen")
                a(f"buffer_store_dwordx4 {vr(P+4,4)}, v18, s[28:31], s53 offen offset:512")
            else:
                lk = f"K1_{pat}_K{j}"; le = f"K1_{pat}_E{j}"
                a("s_add_u32 s54, s53, 0x10000")
                a("s_cmp_ge_u32 s52, 16")
                a(f"s_cbranch_scc1 {lk}")
                a("s_nop 7"); a("s_nop 3")
                for i in range(16):
                    a(f"v_mul_f32 v{A+i}, {hex(QSCALE)}, v{A+i}")
                for i in range(8):
                    a(f"v_cvt_pk_bf16_f32 v{P+i}, v{A+2*i}, v{A+2*i+1}")
                a(f"buffer_store_dwordx4 {vr(P,4)}, v16, s[28:31], s53 offen")
                a(f"buffer_store_dwordx4 {vr(P+4,4)}, v16, s[28:31], s54 offen")
                a(f"s_branch {le}")
                a(f"{lk}:")
                a("s_nop 7"); a("s_nop 3")
                for i in range(8):
                    a(f"v_cvt_pk_bf16_f32 v{P+i}, v{A+2*i}, v{A+2*i+1}")
                a(f"buffer_store_dwordx4 {vr(P,4)}, v16, s[28:31], s53 offen")
                a(f"buffer_store_dwordx4 {vr(P+4,4)}, v16, s[28:31], s54 offen")
                n0 = P + 8; n1 = P + 9
                a(f"v_mul_f32 v{n0}, v{A}, v{A}")
                a(f"v_mul_f32 v{n1}, v{A+8}, v{A+8}")
                for i in range(1, 8):
                    a(f"v_fma_f32 v{n0}, v{A+i}, v{A+i}, v{n0}")
                    a(f"v_fma_f32 v{n1}, v{A+8+i}, v{A+8+i}, v{n1}")
                a(f"v_permlane32_swap_b32 v{n0}, v{n1}")
                a(f"v_add_f32 v{n0}, v{n0}, v{n1}")
                for sh in (1, 2, 4, 8):
                    a(f"v_max_f32_dpp v{n0}, v{n0}, v{n0} row_shr:{sh} row_mask:0xf bank_mask:0xf")
                a(f"v_max_f32_dpp v{n0}, v{n0}, v{n0} row_bcast:15 row_mask:0xa bank_mask:0xf")
                a("s_sub_u32 s55, s52, 16")
                a("s_lshl_b32 s55, s55, 9")
                a("s_lshl_b32 s56, s44, 2")
                a("s_add_u32 s55, s55, s56")
                a(f"s_add_u32 s55, s55, {hex(WS_KM)}")
                a(f"v_lshlrev_b32 v{n1}, 8, v17")
                a("s_mov_b32 exec_lo, 0x80000000")
                a("s_mov_b32 exec_hi, 0x80000000")
                a(f"buffer_store_dword v{n0}, v{n1}, s[28:31], s55 offen")
                a("s_mov_b64 exec, -1")
                a(f"{le}:")
        a("s_endpgm")
    a("K1_END:")
    a("s_endpgm")
    return N, 256, (256, 256, 131072)

def gen_attn(a):
    N = "k2a_kernel"
    header(a, N)
    a("s_cmp_ge_u32 s2, 256")
    a("s_cbranch_scc1 K2A_END")
    a("s_load_dwordx2 s[10:11], s[0:1], 80")
    a("v_lshrrev_b32 v2, 6, v0")
    a("v_and_b32 v1, 63, v0")
    a("v_readfirstlane_b32 s34, v2")
    a("s_and_b32 s42, s2, 7")
    a("s_lshr_b32 s43, s2, 3")
    a("s_lshl_b32 s32, s42, 2")
    a("s_and_b32 s44, s43, 3")
    a("s_add_u32 s32, s32, s44")
    a("s_lshr_b32 s33, s43, 2")
    a("s_lshl_b32 s44, s33, 3")
    a("s_add_u32 s44, s44, s34")
    a("v_lshlrev_b32 v16, 4, v1")
    a("v_lshlrev_b32 v17, 2, v1")
    a("s_lshl_b32 s35, s32, 16")
    a("s_lshl_b32 s36, s44, 10")
    a("s_add_u32 s36, s36, s35")
    a("s_lshl_b32 s37, s32, 8")
    a(f"s_add_u32 s37, s37, {hex(WS_KM)}")
    a("s_lshl_b32 s38, s34, 11")
    a("s_add_u32 s39, s35, s38")
    a(f"s_add_u32 s40, s39, {hex(WS_VF)}")
    a(f"s_add_u32 s39, s39, {hex(WS_KF)}")
    a("s_waitcnt lgkmcnt(0)")
    srd(a, 28, 10, WS_SIZE)
    Q = 4; KM = 8
    a(f"buffer_load_dwordx4 {vr(Q,4)}, v16, s[28:31], s36 offen")
    a(f"buffer_load_dword v{KM}, v17, s[28:31], s37 offen")
    for g in range(4):
        for i in range(2):
            a(f"s_add_u32 m0, s38, {g*16384 + i*1024}")
            a(f"s_add_u32 s41, s39, {g*16384 + i*1024}")
            a("buffer_load_dwordx4 v16, s[28:31], s41 offen lds")
        for i in range(2):
            a(f"s_add_u32 m0, s38, {65536 + g*16384 + i*1024}")
            a(f"s_add_u32 s41, s40, {g*16384 + i*1024}")
            a("buffer_load_dwordx4 v16, s[28:31], s41 offen lds")
    C = 32; S = [48, 64]; O = 80; KF_ = [96, 100]; VF_ = [104, 112]; P = 120
    KA = 18; VA = 19
    a("v_and_b32 v20, 31, v1")
    a("v_and_b32 v21, 27, v1")
    a("v_mov_b32 v22, 0x3f803f80")
    a("v_cmp_eq_u32 vcc, 16, v21")
    a("v_cndmask_b32 v22, 0, v22, vcc")
    for b in VF_:
        for i in range(8):
            a(f"v_mov_b32 v{b+i}, v22")
    a("v_lshrrev_b32 v20, 5, v1")
    a("v_and_b32 v21, 15, v1")
    a("v_lshlrev_b32 v21, 4, v21")
    a("v_lshl_add_u32 v23, v20, 8, v21")
    a("v_add_u32 v23, 0x10000, v23")
    a("s_mov_b32 s46, 0x0000ffff")
    a("s_mov_b32 s47, 0x0000ffff")
    a("s_waitcnt vmcnt(16)")
    a(f"v_dot2_f32_bf16 v9, v{Q}, v{Q}, 0")
    for i in range(1, 4):
        a(f"v_dot2_f32_bf16 v9, v{Q+i}, v{Q+i}, v9")
    for sh in (1, 2, 4, 8):
        a(f"v_max_f32_dpp v{KM}, v{KM}, v{KM} row_shr:{sh} row_mask:0xf bank_mask:0xf")
    a(f"v_max_f32_dpp v{KM}, v{KM}, v{KM} row_bcast:15 row_mask:0xa bank_mask:0xf")
    a(f"v_max_f32_dpp v{KM}, v{KM}, v{KM} row_bcast:31 row_mask:0xc bank_mask:0xf")
    a("v_mov_b32 v10, v9")
    a("v_permlane32_swap_b32 v9, v10")
    a("v_add_f32 v9, v9, v10")
    a(f"v_readlane_b32 s48, v{KM}, 63")
    a("v_mul_f32 v9, s48, v9")
    a("v_sqrt_f32 v9, v9")
    a("v_mul_f32 v9, 0xbf820000, v9")
    a("s_mov_b32 s50, 0")
    a("K2A_START:")
    for i in range(16):
        a(f"v_mov_b32 v{C+i}, v9")
    for i in range(16):
        a(f"v_mov_b32 v{O+i}, 0")
    a(f"v_mov_b32 v{KA}, v16")
    a(f"v_mov_b32 v{VA}, v23")
    a("s_mov_b32 s49, 0")
    def bar(g, tag):
        a("s_or_b32 s51, s49, s50")
        a("s_cmp_eq_u32 s51, 0")
        a(f"s_cbranch_scc0 K2A_B{tag}")
        a(f"s_waitcnt vmcnt({4*(3-g)})")
        a("s_barrier")
        a(f"K2A_B{tag}:")
    def rdK(t):
        a(f"ds_read_b128 {vr(KF_[t%2],4)}, v{KA} offset:{t*1024}")
    def rdV(t):
        a("s_mov_b64 exec, s[46:47]")
        a(f"ds_read_b128 {vr(VF_[t%2],4)}, v{VA} offset:{t*1024}")
        a(f"ds_read_b128 {vr(VF_[t%2]+4,4)}, v{VA} offset:{t*1024+512}")
        a("s_mov_b64 exec, -1")
    def mS(t):
        a(f"v_mfma_f32_32x32x16_bf16 {vr(S[t%2],16)}, {vr(KF_[t%2],4)}, {vr(Q,4)}, {vr(C,16)}")
    def mPV(t, j):
        a(f"v_mfma_f32_32x32x16_bf16 {vr(O,16)}, {vr(VF_[t%2]+4*j,4)}, {vr(P+4*j,4)}, {vr(O,16)}")
    def ex(t, i):
        a(f"v_exp_f32 v{S[t%2]+i}, v{S[t%2]+i}")
    def cv(t, i):
        a(f"v_cvt_pk_bf16_f32 v{P+i}, v{S[t%2]+2*i}, v{S[t%2]+2*i+1}")
    bar(0, "p")
    rdK(0); rdK(1); rdV(0)
    for i in range(4):
        a(f"v_mov_b32 v{P+4+i}, 0")
    a("s_waitcnt lgkmcnt(3)")
    mS(0)
    a("s_nop 7"); a("s_nop 3")
    a("K2A_LOOP:")
    for t in range(8):
        if t in (2, 4, 6):
            bar(t // 2, f"{t}")
        ex(t, 0); ex(t, 1)
        mPV(t - 1, 1)
        ex(t, 2); ex(t, 3); ex(t, 4)
        a("s_waitcnt lgkmcnt(2)")
        mS(t + 1)
        rdK(t + 2); rdV(t + 1)
        ex(t, 5); ex(t, 6); ex(t, 7); ex(t, 8)
        for i in range(4): cv(t, i)
        ex(t, 9); ex(t, 10); ex(t, 11)
        a("s_waitcnt lgkmcnt(3)")
        mPV(t, 0)
        for i in range(12, 16): ex(t, i)
        for i in range(4, 8): cv(t, i)
    a(f"v_add_u32 v{KA}, 0x2000, v{KA}")
    a(f"v_add_u32 v{VA}, 0x2000, v{VA}")
    a("s_add_u32 s49, s49, 1")
    a("s_cmp_lt_u32 s49, 8")
    a("s_cbranch_scc1 K2A_LOOP")
    mPV(7, 1)
    a("s_waitcnt lgkmcnt(0)")
    a(f"v_cmp_le_f32 vcc, 0x21800000, v{O+8}")
    a("s_cmp_eq_u64 vcc, -1")
    a("s_cbranch_scc1 K2A_FIN")
    a("s_cmp_lg_u32 s50, 0")
    a("s_cbranch_scc1 K2A_FIN")
    a("s_mov_b32 s50, 1")
    a("s_mov_b32 s49, 0")
    a(f"v_mov_b32 v{KA}, v16")
    a("v_mov_b32 v9, 0xff800000")
    a("K2A_MAXL:")
    a(f"ds_read_b128 {vr(KF_[0],4)}, v{KA}")
    a("s_waitcnt lgkmcnt(0)")
    a(f"v_mfma_f32_32x32x16_bf16 {vr(S[0],16)}, {vr(KF_[0],4)}, {vr(Q,4)}, 0")
    a(f"v_add_u32 v{KA}, 0x400, v{KA}")
    for i in range(8):
        a(f"v_max3_f32 v9, v{S[0]+2*i}, v{S[0]+2*i+1}, v9")
    a("s_add_u32 s49, s49, 1")
    a("s_cmp_lt_u32 s49, 64")
    a("s_cbranch_scc1 K2A_MAXL")
    a("v_mov_b32 v10, v9")
    a("v_permlane32_swap_b32 v9, v10")
    a("v_max_f32 v9, v9, v10")
    a("v_mul_f32 v9, -1.0, v9")
    a("s_branch K2A_START")
    a("K2A_FIN:")
    a(f"v_rcp_f32 v10, v{O+8}")
    for i in range(8):
        a(f"v_mul_f32 v{O+i}, v{O+i}, v10")
    for i in range(4):
        a(f"v_cvt_pk_bf16_f32 v{P+i}, v{O+2*i}, v{O+2*i+1}")
    a("s_lshl_b32 s36, s44, 15")
    a("s_lshl_b32 s37, s32, 10")
    a("s_add_u32 s36, s36, s37")
    a(f"s_add_u32 s36, s36, {hex(WS_OF)}")
    a(f"buffer_store_dwordx4 {vr(P,4)}, v16, s[28:31], s36 offen")
    a("K2A_END:")
    a("s_endpgm")
    return N, 128, (256, 512, 135168)

SLOT = 7296
def gen_gu(a):
    N = "k2b_kernel"
    header(a, N)
    a("s_cmp_ge_u32 s2, 256")
    a("s_cbranch_scc1 K2B_END")
    a("s_load_dwordx4 s[4:7], s[0:1], 32")
    a("s_load_dwordx2 s[10:11], s[0:1], 80")
    a("v_lshrrev_b32 v2, 6, v0")
    a("v_and_b32 v1, 63, v0")
    a("v_readfirstlane_b32 s34, v2")
    a("s_and_b32 s42, s2, 7")
    a("s_lshr_b32 s43, s2, 3")
    a("s_and_b32 s32, s42, 1")
    a("s_lshl_b32 s32, s32, 3")
    a("s_and_b32 s44, s43, 7")
    a("s_add_u32 s32, s32, s44")
    a("s_lshr_b32 s33, s42, 1")
    a("s_lshl_b32 s33, s33, 2")
    a("s_lshr_b32 s44, s43, 3")
    a("s_add_u32 s33, s33, s44")
    a("s_lshl_b32 s44, s32, 2")
    a("s_add_u32 s44, s44, s34")
    a("v_lshlrev_b32 v16, 4, v1")
    a("v_lshrrev_b32 v17, 5, v1")
    a("s_and_b32 s45, s34, 1")
    a("s_lshl_b32 s46, s45, 7")
    for e in range(2):
        a(f"v_add_u32 v20, s46, v1")
        if e: a("v_add_u32 v20, 64, v20")
        a("v_mul_u32_u24 v21, 0x4925, v20")
        a("v_lshrrev_b32 v21, 18, v21")
        a("v_mul_u32_u24 v22, 14, v21")
        a("v_sub_u32 v22, v20, v22")
        a("v_mul_u32_u24 v21, 0xe00, v21")
        a(f"v_lshl_add_u32 v{3+e}, v22, 4, v21")
    a("s_mov_b32 s48, -1")
    a("s_cmp_eq_u32 s45, 0")
    a("s_cselect_b32 s49, -1, 0")
    a("s_lshr_b32 s47, s34, 1")
    a("s_mul_i32 s40, s47, 3712")
    a("s_lshl_b32 s45, s45, 11")
    a("s_add_u32 s40, s40, s45")
    a("s_mul_i32 s39, s33, 224")
    a("s_lshl_b32 s35, s44, 15")
    a(f"s_add_u32 s35, s35, {hex(WS_XF)}")
    a("s_waitcnt lgkmcnt(0)")
    a("s_cmp_eq_u32 s47, 0")
    a("s_cselect_b32 s20, s4, s6")
    a("s_cselect_b32 s21, s5, s7")
    a("s_mov_b32 s22, 0x1c0000")
    a("s_mov_b32 s23, 0x00020000")
    srd(a, 28, 10, WS_SIZE)
    a("v_bfe_u32 v20, v1, 2, 2")
    a("v_lshl_add_u32 v20, v17, 3, v20")
    a("v_mul_u32_u24 v20, 224, v20")
    a("v_bfe_u32 v21, v1, 4, 1")
    a("v_mul_u32_u24 v21, 0xe80, v21")
    a("v_add_u32 v20, v20, v21")
    a("v_and_b32 v21, 3, v1")
    a("v_lshl_add_u32 v12, v21, 3, v20")
    ACC = 32; XR = 144; WR = 8+0
    XR = 144
    WF = [20, 24, 28, 160]
    def issue(s):
        sl = s % 4
        a(f"s_add_u32 m0, s40, {sl*SLOT}")
        a("buffer_load_dwordx4 v3, s[20:23], s39 offen lds")
        a(f"s_add_u32 m0, s40, {sl*SLOT + 1024}")
        a("s_mov_b64 exec, s[48:49]")
        a("buffer_load_dwordx4 v4, s[20:23], s39 offen lds")
        a("s_mov_b64 exec, -1")
        a("s_add_u32 s39, s39, 57344")
        a(f"buffer_load_dwordx4 {vr(XR+4*sl,4)}, v16, s[28:31], s35 offen")
        a("s_add_u32 s35, s35, 1024")
    for s in range(3): issue(s)
    def rdW(s, j):
        off = (s % 4) * SLOT + j * 32
        b = WF[j % 4]
        a(f"ds_read_b64_tr_b16 {vr(b,2)}, v12 offset:{off}")
        a(f"ds_read_b64_tr_b16 {vr(b+2,2)}, v12 offset:{off+896}")
    for s in range(32):
        left = min(2, 31 - s)
        a(f"s_waitcnt vmcnt({3*left})")
        a("s_barrier")
        if s + 3 < 32: issue(s + 3)
        rdW(s, 0); rdW(s, 1); rdW(s, 2)
        for j in range(7):
            if j + 3 < 7: rdW(s, j + 3)
            n = 2 * min(3, 6 - j)
            a(f"s_waitcnt lgkmcnt({n})")
            acc = vr(ACC + 16*j, 16)
            a(f"v_mfma_f32_32x32x16_bf16 {acc}, {vr(WF[j%4],4)}, {vr(XR+4*(s%4),4)}, {'0' if s == 0 else acc}")
    a("s_mul_i32 s36, s44, 114688")
    a("s_mul_i32 s37, s33, 7168")
    a("s_add_u32 s36, s36, s37")
    a(f"s_add_u32 s36, s36, {hex(WS_HF)}")
    for j in range(7):
        A = ACC + 16 * j
        for i in range(8):
            a(f"v_mul_f32 v{A+i}, v{A+i}, v{A+8+i}")
        for i in range(4):
            a(f"v_cvt_pk_bf16_f32 v{A+8+i}, v{A+2*i}, v{A+2*i+1}")
        a(f"buffer_store_dwordx4 {vr(A+8,4)}, v16, s[28:31], s36 offen")
        a("s_add_u32 s36, s36, 1024")
    a("K2B_END:")
    a("s_endpgm")
    return N, 168, (256, 256, 32768)

def gen_k3(a):
    N = "k3_kernel"
    header(a, N)
    a("s_cmp_ge_u32 s2, 256")
    a("s_cbranch_scc1 K3_END")
    a("s_load_dwordx2 s[4:5], s[0:1], 16")
    a("s_load_dwordx2 s[6:7], s[0:1], 48")
    a("s_load_dwordx2 s[8:9], s[0:1], 64")
    a("s_load_dwordx2 s[10:11], s[0:1], 80")
    a("v_lshrrev_b32 v2, 6, v0")
    a("v_and_b32 v1, 63, v0")
    a("v_readfirstlane_b32 s34, v2")
    a("s_and_b32 s42, s2, 7")
    a("s_lshr_b32 s43, s2, 3")
    a("s_lshl_b32 s32, s42, 2")
    a("s_and_b32 s44, s43, 3")
    a("s_add_u32 s32, s32, s44")
    a("s_lshr_b32 s33, s43, 2")
    a("v_lshlrev_b32 v16, 4, v1")
    a("v_lshrrev_b32 v17, 5, v1")
    a("v_lshrrev_b32 v20, 3, v1")
    a("v_bfe_u32 v21, v1, 4, 1")
    a("v_lshlrev_b32 v21, 2, v21")
    a("v_and_b32 v22, 7, v1")
    a("v_xor_b32 v21, v21, v22")
    a("v_lshlrev_b32 v20, 10, v20")
    a("v_lshl_add_u32 v3, v21, 4, v20")
    a("v_add_u32 v4, 0x2000, v3")
    a("s_lshl_b32 s45, s33, 7")
    a("s_lshl_b32 s36, s34, 17")
    a("s_add_u32 s36, s36, s45")
    a("s_mul_i32 s37, s34, 458752")
    a("s_add_u32 s37, s37, s45")
    a("s_lshl_b32 s38, s32, 16")
    a("s_lshl_b32 s46, s34, 13")
    a("s_add_u32 s38, s38, s46")
    a(f"s_add_u32 s38, s38, {hex(WS_OF)}")
    a("s_add_u32 s39, s38, 32768")
    a("s_mul_i32 s40, s32, 229376")
    a("s_mul_i32 s46, s34, 28672")
    a("s_add_u32 s40, s40, s46")
    a(f"s_add_u32 s40, s40, {hex(WS_HF)}")
    a("s_add_u32 s41, s40, 114688")
    a("s_lshl_b32 s47, s34, 14")
    a("s_waitcnt lgkmcnt(0)")
    srd(a, 16, 4, 0x80000)
    srd(a, 20, 6, 0x1c0000)
    srd(a, 24, 8, 0x200000)
    srd(a, 28, 10, WS_SIZE)
    a("v_lshrrev_b32 v20, 2, v0")
    a("v_and_b32 v21, 3, v0")
    a("v_lshlrev_b32 v20, 2, v20")
    a("v_lshl_add_u32 v5, v21, 15, v20")
    a("s_lshl_b32 s48, s32, 8")
    a(f"s_add_u32 s48, s48, {hex(WS_GP)}")
    G = 8
    for i in range(4):
        a(f"buffer_load_dword v{G+i}, v5, s[28:31], s48 offen")
        a("s_add_u32 s48, s48, 8192")
    a("v_bfe_u32 v20, v1, 2, 2")
    a("v_lshl_add_u32 v20, v17, 2, v20")
    a("v_lshlrev_b32 v20, 7, v20")
    a("v_bfe_u32 v21, v1, 3, 1")
    a("v_lshl_add_u32 v20, v21, 6, v20")
    a("v_bfe_u32 v21, v1, 4, 1")
    a("v_lshl_add_u32 v20, v21, 5, v20")
    a("v_and_b32 v21, 3, v1")
    a("v_lshl_add_u32 v20, v21, 3, v20")
    a("v_add_u32 v12, s47, v20")
    a("v_xor_b32 v13, 64, v12")
    AA = 32; AB = 96; BR = 160; WFb = [224, 232]
    NS = 36; D = 8
    def issue(s):
        sl = s % D
        isa = s < 8
        wsrd = "s[16:19]" if isa else "s[20:23]"
        so = "s36" if isa else "s37"
        a(f"s_add_u32 m0, s47, {sl*2048}")
        a(f"buffer_load_dwordx4 v3, {wsrd}, {so} offen lds")
        a(f"s_add_u32 m0, s47, {sl*2048+1024}")
        a(f"buffer_load_dwordx4 v4, {wsrd}, {so} offen lds")
        a(f"s_add_u32 {so}, {so}, 16384")
        b0, b1 = ("s38", "s39") if isa else ("s40", "s41")
        a(f"buffer_load_dwordx4 {vr(BR+8*sl,4)}, v16, s[28:31], {b0} offen")
        a(f"buffer_load_dwordx4 {vr(BR+8*sl+4,4)}, v16, s[28:31], {b1} offen")
        a(f"s_add_u32 {b0}, {b0}, 1024")
        a(f"s_add_u32 {b1}, {b1}, 1024")
    def rd(s):
        sl = s % D; w = WFb[s % 2]
        for ct in range(2):
            a(f"ds_read_b64_tr_b16 {vr(w+4*ct,2)}, v{12+ct} offset:{sl*2048}")
            a(f"ds_read_b64_tr_b16 {vr(w+4*ct+2,2)}, v{12+ct} offset:{sl*2048+1024}")
    for s in range(D - 1): issue(s)
    def outstanding_after(s, issued):
        return 4 * (issued - 1 - s)
    issued = D - 1
    a(f"s_waitcnt vmcnt({outstanding_after(0, issued)})")
    rd(0)
    for s in range(NS):
        if s + 1 < NS:
            a(f"s_waitcnt vmcnt({outstanding_after(s+1, issued)})")
            rd(s + 1)
            a("s_waitcnt lgkmcnt(4)")
        else:
            a("s_waitcnt lgkmcnt(0)")
        if issued < NS:
            issue(issued); issued += 1
        base = AA if s < 8 else AB
        z = s in (0, 8)
        w = WFb[s % 2]; sl = s % D
        for ct in range(2):
            for tt in range(2):
                acc = vr(base + 16 * (2*ct + tt), 16)
                a(f"v_mfma_f32_32x32x16_bf16 {acc}, {vr(w+4*ct,4)}, {vr(BR+8*sl+4*tt,4)}, {'0' if z else acc}")
    RS = 272; WSZ = 64 * RS
    a("s_barrier")
    a("v_and_b32 v20, 31, v1")
    a(f"v_mul_u32_u24 v20, {RS}, v20")
    a("v_lshl_add_u32 v20, v17, 4, v20")
    a(f"s_mul_i32 s45, s34, {WSZ}")
    a("v_add_u32 v6, s45, v20")
    a(f"v_add_u32 v7, {4*WSZ}, v6")
    for wh, base in ((0, AA), (1, AB)):
        for ct in range(2):
            for tt in range(2):
                for q in range(4):
                    off = tt * 32 * RS + ct * 128 + q * 32
                    a(f"ds_write_b128 v{6+wh}, {vr(base+16*(2*ct+tt)+4*q,4)} offset:{off}")
    a("s_waitcnt lgkmcnt(0)")
    a("s_barrier")
    a("v_lshrrev_b32 v20, 2, v0")
    a(f"v_mul_u32_u24 v20, {RS}, v20")
    a("v_and_b32 v21, 3, v0")
    a("v_lshl_add_u32 v6, v21, 6, v20")
    a(f"v_add_u32 v7, {4*WSZ}, v6")
    R = 32
    for wh in range(2):
        for w in range(4):
            for q in range(4):
                a(f"ds_read_b128 {vr(R + wh*64 + w*16 + q*4, 4)}, v{6+wh} offset:{w*WSZ + q*16}")
    a(f"v_add_f32 v{G}, v{G}, v{G+1}")
    a(f"v_add_f32 v{G+2}, v{G+2}, v{G+3}")
    a(f"v_add_f32 v{G}, v{G}, v{G+2}")
    a(f"v_add_f32_dpp v{G}, v{G}, v{G} quad_perm:[1,0,3,2] row_mask:0xf bank_mask:0xf")
    a(f"v_add_f32_dpp v{G}, v{G}, v{G} quad_perm:[2,3,0,1] row_mask:0xf bank_mask:0xf")
    a(f"v_cvt_pk_bf16_f32 v{G}, v{G}, v{G}")
    a(f"v_and_b32 v{G}, 0xffff0000, v{G}")
    a(f"v_mul_f32 v{G}, 0xbfb8aa3b, v{G}")
    a(f"v_exp_f32 v{G}, v{G}")
    a(f"v_add_f32 v{G}, 1.0, v{G}")
    a(f"v_rcp_f32 v{G}, v{G}")
    a(f"v_cvt_pk_bf16_f32 v{G}, v{G}, v{G}")
    a(f"v_and_b32 v{G}, 0xffff0000, v{G}")
    a(f"v_sub_f32 v{G+1}, 1.0, v{G}")
    a(f"v_cvt_pk_bf16_f32 v{G+1}, v{G+1}, v{G+1}")
    a(f"v_and_b32 v{G+1}, 0xffff0000, v{G+1}")
    a("s_waitcnt lgkmcnt(0)")
    for wh in range(2):
        b = R + wh * 64
        for i in range(16):
            a(f"v_add_f32 v{b+i}, v{b+i}, v{b+16+i}")
            a(f"v_add_f32 v{b+32+i}, v{b+32+i}, v{b+48+i}")
        for i in range(16):
            a(f"v_add_f32 v{b+i}, v{b+i}, v{b+32+i}")
    for i in range(16):
        a(f"v_mul_f32 v{R+i}, v{G}, v{R+i}")
        a(f"v_fma_f32 v{R+i}, v{G+1}, v{R+64+i}, v{R+i}")
    for i in range(8):
        a(f"v_cvt_pk_bf16_f32 v{R+16+i}, v{R+2*i}, v{R+2*i+1}")
    a("v_lshrrev_b32 v20, 2, v0")
    a("v_lshlrev_b32 v20, 10, v20")
    a("v_lshl_add_u32 v20, v21, 5, v20")
    a("s_lshl_b32 s45, s32, 16")
    a("s_lshl_b32 s46, s33, 7")
    a("s_add_u32 s45, s45, s46")
    a(f"buffer_store_dwordx4 {vr(R+16,4)}, v20, s[24:27], s45 offen")
    a(f"buffer_store_dwordx4 {vr(R+20,4)}, v20, s[24:27], s45 offen offset:16")
    a("K3_END:")
    a("s_endpgm")
    return N, 240, (256, 256, 8 * WSZ)

def build(gens, path):
    a = Asm()
    ks = [g(a) for g in gens]
    out = []
    for (n, v, (g, b, l)) in ks:
        out.append(f"; @launch kernel={n} grid=({g},1,1) block=({b},1,1) lds={l}")
    out.append('.amdgcn_target "amdgcn-amd-amdhsa--gfx950"')
    out.append(".text")
    out.append(a.text())
    out.append('.section .rodata,"a"')
    for (n, v, _) in ks:
        out.append(kd(n, v))
    open(path, "w").write("\n".join(out))

if __name__ == "__main__":
    path = sys.argv[1] if len(sys.argv) > 1 else "gated_mix__mha_block__glu_gated_bilinear__prompt.s"
    build([gen_k1, gen_attn, gen_gu, gen_k3], path)
```

```python
import sys
from asmlib import *

WS_QF = 0x000000; WS_KF = 0x200000; WS_VF = 0x400000; WS_OF = 0x600000
WS_HF = 0xA00000; WS_ST = 0x1180000
WS_FL = 0x1200000; WS_FH = 0x1210000; WS_FO = 0x1214000
WS_SIZE = 0x2000000
QSCALE = 0x3eb8aa3b
KN = "gated_mix__mha_block__glu_gated_bilinear__prompt_kernel"
RING = 131072; SLOT = 7296; SYNC = 160256
O_GC = 0; O_AC = 4; O_GO = 8; O_KM = 12; O_NONCE = 16
O_GW = 256; O_GV = 1280
LDS_SIZE = 163840
SPIN = 1 << 20

STAMP = False
OPT = {}

def srd(a, sbase, sptr, size):
    a(f"s_mov_b32 s{sbase}, s{sptr}")
    a(f"s_mov_b32 s{sbase+1}, s{sptr+1}")
    a(f"s_mov_b32 s{sbase+2}, {hex(size)}")
    a(f"s_mov_b32 s{sbase+3}, 0x00020000")

def header(a, name):
    a(f".globl {name}"); a(".p2align 8"); a(f".type {name},@function"); a(f"{name}:")

def kd(name, vgpr, sgpr=102):
    acc = (vgpr + 3) // 4 * 4
    return f""".p2align 6
.amdhsa_kernel {name}
  .amdhsa_next_free_vgpr {vgpr}
  .amdhsa_next_free_sgpr {sgpr}
  .amdhsa_accum_offset {acc}
  .amdhsa_group_segment_fixed_size 0
  .amdhsa_kernarg_size 88
  .amdhsa_user_sgpr_count 2
  .amdhsa_user_sgpr_kernarg_segment_ptr 1
  .amdhsa_system_sgpr_workgroup_id_x 1
.end_amdhsa_kernel
"""

NST = 12
def stamp(a, i):
    if not STAMP: return
    a("s_memtime s[74:75]")
    a("s_memrealtime s[76:77]")
    a("s_waitcnt lgkmcnt(0)")
    a(f"s_mov_b32 s{78+2*i}, s74")
    a(f"s_mov_b32 s{79+2*i}, s76")
def stamp_out(a, n=NST):
    if not STAMP: return
    a("s_mov_b64 exec, 1")
    a("s_lshl_b32 s72, s2, 11")
    a("s_lshl_b32 s73, s44, 7")
    a("s_add_u32 s72, s72, s73")
    a(f"s_add_u32 s72, s72, {hex(WS_ST)}")
    a("v_mov_b32 v0, 0")
    for i in range(n):
        a(f"v_mov_b32 v2, s{78+2*i}")
        a(f"v_mov_b32 v3, s{79+2*i}")
        a(f"buffer_store_dwordx2 v[2:3], v0, s[28:31], s72 offen offset:{8*i}")
        a("s_nop 1")
def gen_dump(a):
    N = "dump_kernel"
    header(a, N)
    a("s_cmp_ge_u32 s2, 256")
    a("s_cbranch_scc1 DUMP_END")
    a("s_load_dwordx2 s[8:9], s[0:1], 64")
    a("s_load_dwordx2 s[10:11], s[0:1], 80")
    a("s_lshl_b32 s3, s2, 12")
    a("v_lshlrev_b32 v1, 4, v0")
    a("s_waitcnt lgkmcnt(0)")
    srd(a, 24, 8, 0x200000)
    srd(a, 28, 10, WS_SIZE)
    a(f"s_add_u32 s4, s3, {hex(WS_ST)}")
    a("buffer_load_dwordx4 v[4:7], v1, s[28:31], s4 offen")
    a("s_waitcnt vmcnt(0)")
    a("buffer_store_dwordx4 v[4:7], v1, s[24:27], s3 offen")
    a("DUMP_END:")
    a("s_endpgm")
    return N, 32, (256, 256, 0)

_uid = [0]
def uid(p):
    _uid[0] += 1
    return f"{p}_{_uid[0]}"

VL = 1
VL16 = 2
VS = 3
VONE = 4
VHI = 5
VT = 6; VT2 = 7

def budget(a, n, D):
    a(f"s_sub_u32 s3, s3, {n}")
    a("s_cmp_lt_i32 s3, 0")
    a(f"s_cbranch_scc1 {D}")
def lds_wait(a, off, target, sleep=1, stmp="s70"):
    L = uid("LW"); D = uid("LD")
    a(f"{L}:")
    a(f"ds_read_b32 v{VT}, v{VS} offset:{off}")
    a("s_waitcnt lgkmcnt(0)")
    a(f"v_readfirstlane_b32 {stmp}, v{VT}")
    a(f"s_cmp_ge_u32 {stmp}, {target}")
    a(f"s_cbranch_scc1 {D}")
    budget(a, 1, D)
    if sleep: a(f"s_sleep {sleep}")
    a(f"s_branch {L}")
    a(f"{D}:")
def lds_arrive(a, off):
    a("s_mov_b64 exec, 1")
    a(f"ds_add_u32 v{VS}, v{VONE} offset:{off}")
    a("s_mov_b64 exec, -1")

def gen_main(a):
    header(a, KN)
    a("s_cmp_ge_u32 s2, 256")
    a("s_cbranch_scc1 K_END")
    stamp(a, 0)
    a(f"s_mov_b32 s3, {SPIN}")
    a("s_load_dwordx4 s[4:7], s[0:1], 0")
    a("s_load_dwordx2 s[10:11], s[0:1], 80")
    a("s_load_dwordx2 s[8:9], s[0:1], 16")
    a("s_load_dwordx4 s[12:15], s[0:1], 32")
    a("s_load_dwordx4 s[16:19], s[0:1], 48")
    a("s_load_dwordx4 s[20:23], s[0:1], 64")
    a("v_lshrrev_b32 v8, 6, v0")
    a(f"v_and_b32 v{VL}, 63, v0")
    a("v_readfirstlane_b32 s44, v8")
    a("s_and_b32 s50, s2, 7")
    a("s_lshr_b32 s51, s2, 3")
    a("s_and_b32 s45, s50, 3")
    a("s_lshl_b32 s45, s45, 2")
    a("s_and_b32 s52, s51, 3")
    a("s_add_u32 s45, s45, s52")
    a("s_lshr_b32 s46, s50, 2")
    a("s_lshl_b32 s46, s46, 3")
    a("s_lshr_b32 s48, s51, 2")
    a("s_add_u32 s46, s46, s48")
    a("s_lshl_b32 s47, s50, 2")
    a("s_add_u32 s47, s47, s52")
    a(f"v_lshlrev_b32 v{VL16}, 4, v{VL}")
    a(f"v_mov_b32 v{VS}, {SYNC}")
    a(f"v_mov_b32 v{VONE}, 1")
    a(f"v_lshrrev_b32 v{VHI}, 5, v{VL}")
    VX0 = 8; VX1 = 9; VWG = 10; VWW = 11; VXR = 12
    VWR = 16; VVS = 17
    WST = 24; ACC = 56; FR = 72
    DUM = 104
    VN = 108
    a("v_mul_u32_u24 v18, 0xaaab, v0")
    a("v_lshrrev_b32 v18, 19, v18")
    a("v_mul_u32_u24 v19, 12, v18")
    a("v_sub_u32 v19, v0, v19")
    a("v_mul_u32_u24 v18, 0xc00, v18")
    a(f"v_lshl_add_u32 v{VWG}, v19, 4, v18")
    a("s_mul_i32 s53, s46, 192")
    a(f"v_lshrrev_b32 v18, 3, v{VL}")
    a(f"v_and_b32 v19, 7, v{VL}")
    a(f"v_lshrrev_b32 v20, 4, v{VL}")
    a("v_xor_b32 v19, v19, v20")
    a("v_lshlrev_b32 v18, 10, v18")
    a(f"v_lshl_add_u32 v{VX0}, v19, 4, v18")
    a(f"v_xor_b32 v{VX1}, 64, v{VX0}")
    a(f"v_add_u32 v{VX1}, 0x2000, v{VX1}")
    a("s_lshl_b32 s54, s45, 17")
    a("s_lshl_b32 s55, s44, 14")
    a("s_add_u32 s54, s54, s55")
    a("s_lshl_b32 s55, s44, 11")
    a("s_waitcnt lgkmcnt(0)")
    srd(a, 24, 4, 0x200000)
    srd(a, 32, 6, 0x180000)
    srd(a, 28, 10, WS_SIZE)
    a("s_cmp_ge_u32 s44, 8")
    a("s_cbranch_scc1 G_ISSUE")
    for c in range(8):
        a(f"s_add_u32 m0, s55, {c*16384 - c*128}")
        a(f"buffer_load_dwordx4 v{VX0}, s[24:27], s54 offen offset:{c*128} lds")
        a(f"s_add_u32 m0, s55, {c*16384 - c*128 + 1024}")
        a(f"buffer_load_dwordx4 v{VX1}, s[24:27], s54 offen offset:{c*128} lds")
        a(f"buffer_load_dwordx4 {vr(WST+4*c,4)}, v{VWG}, s[32:35], s53 offen")
        if c < 7: a("s_add_u32 s53, s53, 196608")
    srd(a, 36, 14, 0x1c0000)
    srd(a, 40, 22, 256)
    a("s_branch Q_SETUP")
    a("G_ISSUE:")
    for c in range(8):
        a(f"buffer_load_dwordx4 {vr(WST+4*c,4)}, v{VWG}, s[32:35], s53 offen")
        if c < 7: a("s_add_u32 s53, s53, 196608")
    srd(a, 40, 18, 1024)
    a(f"s_mov_b32 m0, {SYNC + O_GW}")
    a(f"buffer_load_dwordx4 v{VL16}, s[40:43], 0 offen lds")
    srd(a, 40, 22, 256)
    a("v_mov_b32 v18, 0")
    a("s_cmp_lg_u32 s2, 0")
    a("s_cbranch_scc1 NO_PUB")
    a("s_cmp_lg_u32 s44, 11")
    a("s_cbranch_scc1 NO_PUB")
    a("s_memrealtime s[56:57]")
    a("s_waitcnt lgkmcnt(0)")
    a("s_or_b32 s56, s56, 1")
    a("v_mov_b32 v19, s56")
    a("s_mov_b64 exec, 1")
    a("buffer_store_dword v19, v18, s[40:43], 0 offen sc1")
    a("s_mov_b64 exec, -1")
    a("s_waitcnt vmcnt(0)")
    a("NO_PUB:")
    a("s_sub_u32 s56, s44, 8")
    a("s_lshl_b32 s56, s56, 6")
    a(f"v_add_u32 v19, s56, v{VL}")
    a("v_min_u32 v19, 223, v19")
    a("v_mul_u32_u24 v20, 0x4925, v19")
    a("v_lshrrev_b32 v20, 18, v20")
    a("v_mul_u32_u24 v21, 14, v20")
    a("v_sub_u32 v21, v19, v21")
    a("v_mul_u32_u24 v20, 0xe00, v20")
    a("v_lshl_add_u32 v19, v21, 7, v20")
    a("s_mul_i32 s56, s51, 57344")
    a("s_lshr_b32 s57, s50, 2")
    a("s_mul_i32 s57, s57, 1792")
    a("s_add_u32 s56, s56, s57")
    srd(a, 36, 12, 0x1c0000)
    a(f"buffer_load_dword v{DUM}, v19, s[36:39], s56 offen")
    srd(a, 36, 14, 0x1c0000)
    a(f"buffer_load_dword v{DUM+1}, v19, s[36:39], s56 offen")
    a(f"buffer_load_dword v{VN}, v18, s[40:43], 0 offen sc1")
    GX = 4
    a("Q_SETUP:")
    stamp(a, 1)
    a("v_mov_b32 v18, 0")
    a("v_mov_b32 v19, 0")
    a("v_mov_b32 v20, 0")
    a("v_mov_b32 v21, 0")
    a("s_cmp_lg_u32 s44, 0")
    a("s_cbranch_scc1 NO_ZERO")
    a(f"ds_write_b128 v{VS}, v[18:21]")
    a("NO_ZERO:")
    a(f"v_lshlrev_b32 v{VWW}, 4, v0")
    a(f"v_add_u32 v{VWW}, {RING}, v{VWW}")
    a("s_and_b32 s56, s44, 3")
    a("s_lshr_b32 s57, s44, 2")
    a(f"v_and_b32 v18, 31, v{VL}")
    a("v_bfe_u32 v19, v18, 1, 3")
    a(f"v_xor_b32 v19, v19, v{VHI}")
    a("v_lshlrev_b32 v19, 4, v19")
    a("v_lshl_add_u32 v19, v18, 7, v19")
    a("s_lshl_b32 s58, s56, 12")
    a(f"v_add_u32 v{VXR}, s58, v19")
    a(f"v_xor_b32 v{VXR+1}, 32, v{VXR}")
    a(f"v_xor_b32 v{VXR+2}, 64, v{VXR}")
    a(f"v_xor_b32 v{VXR+3}, 96, v{VXR}")
    a(f"v_bfe_u32 v18, v{VL}, 2, 2")
    a(f"v_lshl_add_u32 v18, v{VHI}, 3, v18")
    a("v_mul_u32_u24 v18, 192, v18")
    a(f"v_bfe_u32 v19, v{VL}, 4, 1")
    a("v_lshl_add_u32 v18, v19, 5, v18")
    a(f"v_and_b32 v19, 3, v{VL}")
    a("v_lshl_add_u32 v18, v19, 3, v18")
    a("s_lshl_b32 s58, s57, 6")
    a(f"s_add_u32 s58, s58, {RING}")
    a(f"v_add_u32 v{VWR}, s58, v18")
    a(f"v_bfe_u32 v18, v{VL}, 4, 1")
    a("v_lshlrev_b32 v18, 16, v18")
    a(f"v_lshl_add_u32 v18, v{VHI}, 8, v18")
    a(f"v_and_b32 v19, 15, v{VL}")
    a(f"v_lshl_add_u32 v{VVS}, v19, 4, v18")
    a("s_mul_i32 s58, s46, 3")
    a("s_add_u32 s58, s58, s57")
    a("s_lshl_b32 s59, s45, 2")
    a("s_add_u32 s59, s59, s56")
    a("s_cmp_ge_u32 s58, 32")
    a("s_cselect_b32 s60, 1, 0")
    a("s_cmp_ge_u32 s44, 8")
    a("s_cbranch_scc1 QG_LOOP")
    def qkv_loop(isG):
        per = 1 if isG else 3
        extra = GX if isG else 0
        for c in range(8):
            a(f"s_waitcnt vmcnt({per*(7-c) + extra})")
            a(f"ds_write_b128 v{VWW}, {vr(WST+4*c,4)} offset:{(c&1)*12288}")
            if isG and c == 7:
                a("s_waitcnt vmcnt(0)")
                a("s_cmp_lg_u32 s44, 11")
                a("s_cbranch_scc1 NONCE_OK")
                a("v_mov_b32 v18, 0")
                a("NONCE_L:")
                a(f"v_readfirstlane_b32 s49, v{VN}")
                a("s_cmp_lg_u32 s49, 0")
                a("s_cbranch_scc1 NONCE_W")
                budget(a, 16, "NONCE_W")
                a("s_sleep 2")
                a(f"buffer_load_dword v{VN}, v18, s[40:43], 0 offen sc1")
                a("s_waitcnt vmcnt(0)")
                a("s_branch NONCE_L")
                a("NONCE_W:")
                a(f"ds_write_b32 v{VS}, v{VN} offset:{O_NONCE}")
                a("NONCE_OK:")
            if c == 4:
                for q in range(4): a(f"v_add_u32 v{VXR+q}, 0x10000, v{VXR+q}")
            a("s_waitcnt lgkmcnt(0)")
            a("s_barrier")
            if c == 0: stamp(a, 2)
            for q in range(4):
                f = FR + 8*q
                a(f"ds_read_b128 {vr(f,4)}, v{VXR+q} offset:{(c&3)*16384}")
                off = (c&1)*12288 + q*3072
                a(f"ds_read_b64_tr_b16 {vr(f+4,2)}, v{VWR} offset:{off}")
                a(f"ds_read_b64_tr_b16 {vr(f+6,2)}, v{VWR} offset:{off+768}")
            if c == 7:
                a(f"ds_read_b32 v{VN}, v{VS} offset:{O_NONCE}")
            lv = uid("QV"); le = uid("QE")
            a("s_cmp_lg_u32 s60, 0")
            a(f"s_cbranch_scc1 {lv}")
            x7 = 1 if c == 7 else 0
            for typ in "TV":
                if typ == "V": a(f"{lv}:")
                for q in range(4):
                    f = FR + 8*q
                    a(f"s_waitcnt lgkmcnt({3*(3-q) + x7})")
                    cc = "0" if (c == 0 and q == 0) else vr(ACC,16)
                    if typ == "T":
                        a(f"v_mfma_f32_32x32x16_bf16 {vr(ACC,16)}, {vr(f+4,4)}, {vr(f,4)}, {cc}")
                    else:
                        a(f"v_mfma_f32_32x32x16_bf16 {vr(ACC,16)}, {vr(f,4)}, {vr(f+4,4)}, {cc}")
                if typ == "T": a(f"s_branch {le}")
            a(f"{le}:")
        a("s_waitcnt lgkmcnt(0)")
        a("s_barrier")
    qkv_loop(False)
    a("s_branch Q_EPI")
    a("QG_LOOP:")
    qkv_loop(True)
    G_DMA0 = 110; G_DMA1 = 111
    gu_setup(a)
    a("Q_EPI:")
    stamp(a, 3)
    a(f"v_readfirstlane_b32 s49, v{VN}")
    A = ACC; P = FR
    a("s_lshl_b32 s61, s58, 17")
    a("s_lshl_b32 s62, s59, 10")
    a("s_add_u32 s61, s61, s62")
    a("s_add_u32 s62, s61, 0x10000")
    a(f"v_mov_b32 v{P+9}, 0")
    a("s_cmp_lg_u32 s60, 0")
    a("s_cbranch_scc1 QE_V")
    a("s_cmp_ge_u32 s58, 16")
    a("s_cbranch_scc1 QE_K")
    for i in range(16):
        a(f"v_mul_f32 v{A+i}, {hex(QSCALE)}, v{A+i}")
    for i in range(8):
        a(f"v_cvt_pk_bf16_f32 v{P+i}, v{A+2*i}, v{A+2*i+1}")
    a(f"buffer_store_dwordx4 {vr(P,4)}, v{VL16}, s[28:31], s61 offen sc1")
    a(f"buffer_store_dwordx4 {vr(P+4,4)}, v{VL16}, s[28:31], s62 offen sc1")
    a("s_branch QE_F")
    a("QE_K:")
    for i in range(8):
        a(f"v_cvt_pk_bf16_f32 v{P+i}, v{A+2*i}, v{A+2*i+1}")
    a(f"buffer_store_dwordx4 {vr(P,4)}, v{VL16}, s[28:31], s61 offen sc1")
    a(f"buffer_store_dwordx4 {vr(P+4,4)}, v{VL16}, s[28:31], s62 offen sc1")
    n0 = P + 9; n1 = P + 10
    a(f"v_mul_f32 v{n0}, v{A}, v{A}")
    a(f"v_mul_f32 v{n1}, v{A+8}, v{A+8}")
    for i in range(1, 8):
        a(f"v_fma_f32 v{n0}, v{A+i}, v{A+i}, v{n0}")
        a(f"v_fma_f32 v{n1}, v{A+8+i}, v{A+8+i}, v{n1}")
    a(f"v_permlane32_swap_b32 v{n0}, v{n1}")
    a(f"v_add_f32 v{n0}, v{n0}, v{n1}")
    for sh in (1, 2, 4, 8):
        a(f"v_max_f32_dpp v{n0}, v{n0}, v{n0} row_shr:{sh} row_mask:0xf bank_mask:0xf")
    a(f"v_max_f32_dpp v{n0}, v{n0}, v{n0} row_bcast:15 row_mask:0xa bank_mask:0xf")
    a("s_branch QE_F")
    a("QE_V:")
    for i in range(8):
        a(f"v_cvt_pk_bf16_f32 v{P+i}, v{A+2*i}, v{A+2*i+1}")
    a(f"buffer_store_dwordx4 {vr(P,4)}, v{VVS}, s[28:31], s61 offen sc1")
    a(f"buffer_store_dwordx4 {vr(P+4,4)}, v{VVS}, s[28:31], s61 offen offset:512 sc1")
    a("QE_F:")
    a(f"v_mov_b32 v{P+8}, s49")
    a(f"v_lshlrev_b32 v{P+10}, 9, v{VHI}")
    a("s_lshl_b32 s61, s58, 10")
    a("s_lshl_b32 s62, s59, 3")
    a("s_add_u32 s61, s61, s62")
    a(f"s_add_u32 s61, s61, {hex(WS_FL)}")
    a("s_cmp_ge_u32 s44, 8")
    a("s_cbranch_scc1 G_FLAG")
    a("s_waitcnt vmcnt(0)")
    a("s_mov_b32 exec_lo, 0x80000000")
    a("s_mov_b32 exec_hi, 0x80000000")
    a(f"buffer_store_dwordx2 {vr(P+8,2)}, v{P+10}, s[28:31], s61 offen sc1")
    a("s_mov_b64 exec, -1")
    stamp(a, 4)
    gen_attn(a)
    a("G_FLAG:")
    a("s_waitcnt vmcnt(0)")
    a("s_mov_b32 exec_lo, 0x80000000")
    a("s_mov_b32 exec_hi, 0x80000000")
    a(f"buffer_store_dwordx2 {vr(P+8,2)}, v{P+10}, s[28:31], s61 offen sc1")
    a("s_mov_b64 exec, -1")
    stamp(a, 4)
    gen_gu(a)
    gen_down(a)
    a("K_END:")
    a("s_endpgm")
    return KN, 168, (256, 768, LDS_SIZE)

GD0 = 18; GD1 = 19
def gu_issue(a, sl):
    a(f"s_add_u32 m0, s64, {sl*SLOT}")
    a(f"buffer_load_dwordx4 v{GD0}, s[36:39], s63 offen lds")
    a(f"s_add_u32 m0, s64, {sl*SLOT + 1024}")
    a("s_mov_b64 exec, s[68:69]")
    a(f"buffer_load_dwordx4 v{GD1}, s[36:39], s63 offen lds")
    a("s_mov_b64 exec, -1")
    a("s_add_u32 s63, s63, 57344")
def gu_setup(a):
    a("s_and_b32 s61, s44, 1")
    a("s_lshl_b32 s62, s61, 7")
    for e in range(2):
        a(f"v_add_u32 v20, s62, v{VL}")
        if e: a("v_add_u32 v20, 64, v20")
        a("v_mul_u32_u24 v21, 0x4925, v20")
        a("v_lshrrev_b32 v21, 18, v21")
        a("v_mul_u32_u24 v22, 14, v21")
        a("v_sub_u32 v22, v20, v22")
        a("v_mul_u32_u24 v21, 0xe00, v21")
        a(f"v_lshl_add_u32 v{GD0+e}, v22, 4, v21")
    a("s_mov_b32 s68, -1")
    a("s_cmp_eq_u32 s61, 0")
    a("s_cselect_b32 s69, -1, 0")
    a("s_bfe_u32 s62, s44, 0x10001")
    a("s_mul_i32 s64, s62, 3712")
    a("s_lshl_b32 s61, s61, 11")
    a("s_add_u32 s64, s64, s61")
    a(f"s_add_u32 s64, s64, {RING}")
    a("s_mul_i32 s63, s46, 224")
    a("s_cmp_eq_u32 s62, 0")
    a("s_cselect_b32 s36, s12, s14")
    a("s_cselect_b32 s37, s13, s15")
    a("s_mov_b32 s38, 0x1c0000")
    a("s_mov_b32 s39, 0x00020000")
    for s in range(3): gu_issue(a, s)

def gen_gu(a):
    VXR = 12
    TR = 16; GWA = 17; LG = 20
    WF = 24; XF = 52; GWF = 8
    ACC = 56
    for q in range(4): a(f"v_subrev_u32 v{VXR+q}, 0x10000, v{VXR+q}")
    a(f"v_bfe_u32 v20, v{VL}, 2, 2")
    a(f"v_lshl_add_u32 v20, v{VHI}, 3, v20")
    a("v_mul_u32_u24 v20, 224, v20")
    a(f"v_bfe_u32 v21, v{VL}, 4, 1")
    a("v_mul_u32_u24 v21, 0xe80, v21")
    a("v_add_u32 v20, v20, v21")
    a(f"v_and_b32 v21, 3, v{VL}")
    a(f"v_lshl_add_u32 v{TR}, v21, 3, v20")
    a(f"v_add_u32 v{TR}, {RING}, v{TR}")
    a(f"v_lshl_add_u32 v{GWA}, v{VHI}, 4, v{VS}")
    a(f"v_mov_b32 v{LG}, 0")
    for i in range(112): a(f"v_mov_b32 v{ACC+i}, 0")
    lds_arrive(a, O_GC)
    a("s_mov_b32 s61, 4")
    a("s_mov_b32 s62, 0")
    a("GU_LOOP:")
    for q in range(4):
        lds_wait(a, O_GC, "s61", sleep=0)
        a("s_add_u32 s61, s61, 4")
        gu_issue(a, (q + 3) % 4)
        a(f"ds_read_b128 {vr(XF,4)}, v{VXR+q}")
        for j in range(7):
            off = q * SLOT + j * 32
            a(f"ds_read_b64_tr_b16 {vr(WF+4*j,2)}, v{TR} offset:{off}")
            a(f"ds_read_b64_tr_b16 {vr(WF+4*j+2,2)}, v{TR} offset:{off+896}")
        a(f"ds_read_b128 {vr(GWF,4)}, v{GWA} offset:{O_GW + q*32}")
        a("s_waitcnt vmcnt(4)")
        lds_arrive(a, O_GC)
        a(f"v_add_u32 v{VXR+q}, 0x4000, v{VXR+q}")
        for j in range(7):
            a(f"s_waitcnt lgkmcnt({2*(6-j) + 2})")
            acc = vr(ACC + 16*j, 16)
            a(f"v_mfma_f32_32x32x16_bf16 {acc}, {vr(WF+4*j,4)}, {vr(XF,4)}, {acc}")
        a("s_waitcnt lgkmcnt(1)")
        for i in range(4):
            a(f"v_dot2_f32_bf16 v{LG}, v{XF+i}, v{GWF+i}, v{LG}")
    a(f"v_add_u32 v{GWA}, 128, v{GWA}")
    a("s_add_u32 s62, s62, 1")
    a("s_cmp_lt_u32 s62, 8")
    a("s_cbranch_scc1 GU_LOOP")
    stamp(a, 5)
    a("s_mul_i32 s62, s59, 114688")
    a("s_mul_i32 s63, s46, 7168")
    a("s_add_u32 s62, s62, s63")
    a(f"s_add_u32 s62, s62, {hex(WS_HF)}")
    for j in range(7):
        A = ACC + 16 * j
        for i in range(8):
            a(f"v_mul_f32 v{A+i}, v{A+i}, v{A+8+i}")
        for i in range(4):
            a(f"v_cvt_pk_bf16_f32 v{A+8+i}, v{A+2*i}, v{A+2*i+1}")
        a(f"buffer_store_dwordx4 {vr(A+8,4)}, v{VL16}, s[28:31], s62 offen sc1")
        if j < 6: a("s_add_u32 s62, s62, 1024")
    a(f"v_mov_b32 v21, v{LG}")
    a(f"v_permlane32_swap_b32 v{LG}, v21")
    a(f"v_add_f32 v{LG}, v{LG}, v21")
    a(f"v_cvt_pk_bf16_f32 v{LG}, v{LG}, v{LG}")
    a(f"v_and_b32 v{LG}, 0xffff0000, v{LG}")
    a(f"v_mul_f32 v{LG}, 0xbfb8aa3b, v{LG}")
    a(f"v_exp_f32 v{LG}, v{LG}")
    a(f"v_add_f32 v{LG}, 1.0, v{LG}")
    a(f"v_rcp_f32 v{LG}, v{LG}")
    a(f"v_cvt_pk_bf16_f32 v{LG}, v{LG}, v{LG}")
    a(f"v_and_b32 v{LG}, 0xffff0000, v{LG}")
    a(f"v_and_b32 v21, 31, v{VL}")
    a(f"v_lshl_add_u32 v21, v21, 2, v{VS}")
    a("s_and_b32 s56, s44, 3")
    a("s_lshl_b32 s57, s56, 7")
    a("v_add_u32 v21, s57, v21")
    a(f"ds_write_b32 v21, v{LG} offset:{O_GV}")
    a("s_lshl_b32 s62, s59, 6")
    a("s_lshl_b32 s63, s46, 2")
    a("s_add_u32 s62, s62, s63")
    a(f"s_add_u32 s62, s62, {hex(WS_FH)}")
    a("v_mov_b32 v21, s49")
    a("v_mov_b32 v22, 0")
    a("s_waitcnt vmcnt(0)")
    a("s_mov_b64 exec, 1")
    a("buffer_store_dword v21, v22, s[28:31], s62 offen sc1")
    a("s_mov_b64 exec, -1")
    lds_wait(a, O_GC, "s61", sleep=0)
    a("s_add_u32 s61, s61, 4")
    lds_arrive(a, O_GC)
    lds_wait(a, O_GC, "s61", sleep=0)
    a("s_add_u32 s61, s61, 4")

def gpoll(a, addr_v, soff, mask, tag, vtmp):
    L = uid("GP"); D = uid("GD")
    a(f"s_mov_b32 exec_lo, {mask}")
    a("s_mov_b32 exec_hi, 0")
    a(f"{L}:")
    a(f"buffer_load_dword v{vtmp}, v{addr_v}, s[28:31], {soff} offen sc1")
    a("s_waitcnt vmcnt(0)")
    a(f"v_cmp_ne_u32 vcc, s49, v{vtmp}")
    a("s_cmp_eq_u64 vcc, 0")
    a(f"s_cbranch_scc1 {D}")
    budget(a, 16, D)
    a("s_sleep 4")
    a(f"s_branch {L}")
    a(f"{D}:")
    a("s_mov_b64 exec, -1")

def gen_down(a):
    D0 = 8; TR0 = 10; TR1 = 11
    WF = [32, 40]; BR = 48; ACC = 104
    a("s_and_b32 s57, s46, 1")
    a("s_lshl_b32 s58, s45, 1")
    a("s_add_u32 s57, s57, s58")
    a("s_lshr_b32 s58, s46, 1")
    srd(a, 24, 16, 0x1c0000)
    srd(a, 32, 8, 0x80000)
    srd(a, 40, 20, 0x200000)
    a(f"v_lshrrev_b32 v20, 3, v{VL}")
    a(f"v_bfe_u32 v21, v{VL}, 4, 1")
    a("v_lshlrev_b32 v21, 2, v21")
    a(f"v_and_b32 v22, 7, v{VL}")
    a("v_xor_b32 v21, v21, v22")
    a("v_lshlrev_b32 v20, 10, v20")
    a(f"v_lshl_add_u32 v{D0}, v21, 4, v20")
    a("s_lshl_b32 s59, s58, 7")
    a("s_mul_i32 s62, s56, 458752")
    a("s_add_u32 s62, s62, s59")
    a("s_mul_i32 s63, s56, 7168")
    a(f"s_add_u32 s63, s63, {RING}")
    a(f"v_bfe_u32 v20, v{VL}, 2, 2")
    a(f"v_lshl_add_u32 v20, v{VHI}, 2, v20")
    a("v_lshlrev_b32 v20, 7, v20")
    a(f"v_bfe_u32 v21, v{VL}, 3, 1")
    a("v_lshl_add_u32 v20, v21, 6, v20")
    a(f"v_bfe_u32 v21, v{VL}, 4, 1")
    a("v_lshl_add_u32 v20, v21, 5, v20")
    a(f"v_and_b32 v21, 3, v{VL}")
    a("v_lshl_add_u32 v12, v21, 3, v20")
    a(f"v_add_u32 v{TR0}, s63, v12")
    a(f"v_xor_b32 v{TR1}, 64, v{TR0}")
    def wdma(u):
        a(f"s_add_u32 m0, s63, {(u % 7)*1024}")
        a(f"buffer_load_dwordx4 v{D0}, s[24:27], s62 offen lds")
        a("s_add_u32 s62, s62, 8192")
    for u in range(7): wdma(u)
    for i in range(64): a(f"v_mov_b32 v{ACC+i}, 0")
    a(f"v_lshrrev_b32 v20, 2, v{VL}")
    a(f"v_and_b32 v21, 3, v{VL}")
    a("v_lshlrev_b32 v20, 6, v20")
    a("v_lshl_add_u32 v20, v21, 2, v20")
    a("s_lshl_b32 s64, s57, 7")
    a("s_lshl_b32 s65, s56, 4")
    a("s_add_u32 s64, s64, s65")
    a(f"s_add_u32 s64, s64, {hex(WS_FH)}")
    gpoll(a, 20, "s64", "0xff", "h", 21)
    stamp(a, 6)
    a("s_mul_i32 s64, s57, 229376")
    a("s_mul_i32 s65, s56, 28672")
    a("s_add_u32 s64, s64, s65")
    a(f"s_add_u32 s64, s64, {hex(WS_HF)}")
    a("s_add_u32 s65, s64, 114688")
    def bload(s):
        sl = s % 7
        a(f"buffer_load_dwordx4 {vr(BR+8*sl,4)}, v{VL16}, s[28:31], s64 offen sc1")
        a(f"buffer_load_dwordx4 {vr(BR+8*sl+4,4)}, v{VL16}, s[28:31], s65 offen sc1")
        a("s_add_u32 s64, s64, 1024")
        a("s_add_u32 s65, s65, 1024")
    def rd(s):
        w = WF[s % 2]
        u0 = (2*s) % 7; u1 = (2*s + 1) % 7
        for ct, tr in ((0, TR0), (1, TR1)):
            a(f"ds_read_b64_tr_b16 {vr(w+4*ct,2)}, v{tr} offset:{u0*1024}")
            a(f"ds_read_b64_tr_b16 {vr(w+4*ct+2,2)}, v{tr} offset:{u1*1024}")
    for s in range(6): bload(s)
    rd(0)
    a("s_mov_b32 s66, 0")
    a("DN_LOOP:")
    for s in range(14):
        a("s_waitcnt vmcnt(7)")
        rd(s + 1)
        a("s_waitcnt lgkmcnt(4)")
        wdma(2*s + 7); wdma(2*s + 8)
        w = WF[s % 2]; sl = s % 7
        for ct in range(2):
            for tt in range(2):
                acc = vr(ACC + 16 * (2*ct + tt), 16)
                a(f"v_mfma_f32_32x32x16_bf16 {acc}, {vr(w+4*ct,4)}, {vr(BR+8*sl+4*tt,4)}, {acc}")
        bload(s + 6)
    a("s_add_u32 s66, s66, 1")
    a("s_cmp_lt_u32 s66, 2")
    a("s_cbranch_scc1 DN_LOOP")
    stamp(a, 7)
    lds_wait(a, O_AC, "48", sleep=2)
    stamp(a, 8)
    for q in range(4):
        sk = uid("XS")
        a(f"s_cmp_eq_u32 s56, {q}")
        a(f"s_cbranch_scc1 {sk}")
        a(f"s_sub_u32 s66, s56, {q+1}")
        a("s_and_b32 s66, s66, 3")
        a("s_lshl_b32 s66, s66, 12")
        a(f"v_add_u32 v13, s66, v{VL16}")
        for i in range(4):
            a(f"ds_write_b128 v13, {vr(ACC+16*q+4*i,4)} offset:{q*12288 + i*1024}")
        a(f"s_branch {sk}_e")
        a(f"{sk}:")
        for i in range(16): a(f"v_mov_b32 v{16+i}, v{ACC+16*q+i}")
        a(f"{sk}_e:")
    lds_arrive(a, O_GC)
    lds_wait(a, O_GC, "s61", sleep=0)
    a("s_add_u32 s61, s61, 4")
    BP = 16
    a("s_mul_i32 s66, s56, 12288")
    a(f"v_add_u32 v13, s66, v{VL16}")
    for t in range(3):
        for i in range(4):
            a(f"ds_read_b128 {vr(ACC+16*t+4*i,4)}, v13 offset:{t*4096 + i*1024}")
    a("s_and_b32 s66, s46, 1")
    a("s_lshl_b32 s66, s66, 8")
    a("s_and_b32 s67, s56, 1")
    a("s_lshl_b32 s71, s67, 7")
    a("s_add_u32 s66, s66, s71")
    a(f"v_and_b32 v14, 31, v{VL}")
    a(f"v_lshl_add_u32 v15, v14, 2, v{VS}")
    a("v_add_u32 v15, s66, v15")
    a(f"ds_read_b32 v9, v15 offset:{O_GV}")
    a("s_waitcnt vmcnt(0) lgkmcnt(0)")
    lds_arrive(a, O_GC)
    for i in range(16):
        a(f"v_add_f32 v{ACC+i}, v{ACC+i}, v{ACC+16+i}")
        a(f"v_add_f32 v{BP+i}, v{BP+i}, v{ACC+32+i}")
    for i in range(16):
        a(f"v_add_f32 v{BP+i}, v{BP+i}, v{ACC+i}")
    a("v_sub_f32 v10, 1.0, v9")
    a("v_cvt_pk_bf16_f32 v10, v10, v10")
    a("v_and_b32 v10, 0xffff0000, v10")
    for i in range(16):
        a(f"v_mul_f32 v{BP+i}, v10, v{BP+i}")
    lds_wait(a, O_GC, "s61", sleep=0)
    a("s_add_u32 s61, s61, 4")
    a("s_lshl_b32 s62, s56, 17")
    a("s_add_u32 s62, s62, s59")
    a("s_lshl_b32 s63, s56, 14")
    for u in range(16):
        a(f"s_add_u32 m0, s63, {u*1024}")
        a(f"buffer_load_dwordx4 v{D0}, s[32:35], s62 offen lds")
        a("s_add_u32 s62, s62, 8192")
    a("s_lshr_b32 s71, s56, 1")
    a("s_lshl_b32 s66, s71, 6")
    a("v_xor_b32 v12, s66, v12")
    a("s_lshl_b32 s64, s57, 1")
    a("s_add_u32 s64, s64, s67")
    a("s_lshl_b32 s65, s64, 7")
    a(f"s_add_u32 s65, s65, {hex(WS_FO)}")
    a("s_lshl_b32 s62, s64, 15")
    a(f"s_add_u32 s62, s62, {hex(WS_OF)}")
    a("v_lshlrev_b32 v14, 10, v14")
    a(f"v_lshl_add_u32 v14, v{VHI}, 4, v14")
    a("s_lshl_b32 s63, s64, 15")
    a("s_add_u32 s63, s63, s59")
    a("s_add_u32 s63, s63, s66")
    a(f"v_lshlrev_b32 v13, 2, v{VL}")
    a("s_waitcnt vmcnt(0)")
    lds_arrive(a, O_GC)
    lds_wait(a, O_GC, "s61", sleep=0)
    OR = 40; AC2 = 104; W2 = [120, 124, 128, 132]
    def rdo(h):
        w = W2[h % 4]
        a(f"ds_read_b64_tr_b16 {vr(w,2)}, v12 offset:{h*2048}")
        a(f"ds_read_b64_tr_b16 {vr(w+2,2)}, v12 offset:{h*2048+1024}")
    def oload(h):
        a(f"buffer_load_dwordx4 {vr(OR+4*(h%16),4)}, v{VL16}, s[28:31], s62 offen offset:{(h%4)*1024} sc1")
        if h % 4 == 3: a("s_add_u32 s62, s62, 4096")
    rdo(0); rdo(1); rdo(2)
    stamp(a, 9)
    gpoll(a, 13, "s65", "0xffffffff", "o", 15)
    stamp(a, 10)
    for h in range(16): oload(h)
    for h in range(32):
        if h + 3 < 32: rdo(h + 3)
        a(f"s_waitcnt vmcnt({min(15, 31-h)}) lgkmcnt({2*min(3, 31-h)})")
        a(f"v_mfma_f32_32x32x16_bf16 {vr(AC2,16)}, {vr(W2[h%4],4)}, {vr(OR+4*(h%16),4)}, {'0' if h == 0 else vr(AC2,16)}")
        if h + 16 < 32: oload(h + 16)
    for i in range(16):
        a(f"v_fma_f32 v{BP+i}, v9, v{AC2+i}, v{BP+i}")
    for i in range(8):
        a(f"v_cvt_pk_bf16_f32 v{OR+i}, v{BP+2*i}, v{BP+2*i+1}")
    for b in (0, 4):
        a(f"v_permlane32_swap_b32 v{OR+b}, v{OR+b+2}")
        a(f"v_permlane32_swap_b32 v{OR+b+1}, v{OR+b+3}")
    a(f"buffer_store_dwordx4 {vr(OR,4)}, v14, s[40:43], s63 offen")
    a(f"buffer_store_dwordx4 {vr(OR+4,4)}, v14, s[40:43], s63 offen offset:32")
    if STAMP:
        a("s_waitcnt vmcnt(0)")
        stamp(a, 11)
        stamp_out(a)

def gen_attn(a):
    Q = 8; M = 12; KA = 15; VA = 16; KW = 17; VVB = 18
    C = 24; S = [40, 56]; O = 72; KF_ = [88, 92]; VF_ = [96, 104]; P = 112; STG = 120
    DUM = 128
    a("s_cmp_ge_u32 s44, 5")
    a("s_cbranch_scc1 A_NOTOUCH")
    a("s_lshl_b32 s56, s44, 6")
    a(f"v_add_u32 v19, s56, v{VL}")
    a("v_min_u32 v19, 223, v19")
    a("v_lshrrev_b32 v20, 2, v19")
    a("v_and_b32 v21, 3, v19")
    a("v_lshlrev_b32 v20, 10, v20")
    a("v_lshl_add_u32 v19, v21, 7, v20")
    a("s_lshr_b32 s57, s50, 2")
    a("s_lshl_b32 s57, s57, 9")
    a("s_cmp_eq_u32 s44, 4")
    a("s_cbranch_scc1 A_TWO")
    a("s_mul_i32 s56, s51, 57344")
    a("s_add_u32 s56, s56, s57")
    srd(a, 36, 16, 0x1c0000)
    a(f"buffer_load_dword v{DUM}, v19, s[36:39], s56 offen")
    a("s_branch A_NOTOUCH")
    a("A_TWO:")
    a(f"v_lshrrev_b32 v20, 2, v{VL}")
    a(f"v_and_b32 v21, 3, v{VL}")
    a("v_lshlrev_b32 v20, 10, v20")
    a("v_lshl_add_u32 v19, v21, 7, v20")
    a("s_lshl_b32 s56, s51, 14")
    a("s_add_u32 s56, s56, s57")
    srd(a, 36, 8, 0x80000)
    a(f"buffer_load_dword v{DUM}, v19, s[36:39], s56 offen")
    a("A_NOTOUCH:")
    a("s_lshl_b32 s59, s48, 3")
    a("s_add_u32 s59, s59, s44")
    a("s_lshl_b32 s56, s47, 16")
    a("s_lshl_b32 s57, s59, 10")
    a("s_add_u32 s57, s57, s56")
    a("s_lshl_b32 s58, s44, 10")
    a("s_add_u32 s62, s56, s58")
    a(f"s_add_u32 s63, s62, {hex(WS_VF)}")
    a(f"s_add_u32 s62, s62, {hex(WS_KF)}")
    a(f"v_add_u32 v{KW}, s58, v{VL16}")
    a(f"v_and_b32 v21, 27, v{VL}")
    a("v_mov_b32 v22, 0x3f803f80")
    a("v_cmp_eq_u32 vcc, 16, v21")
    a("v_cndmask_b32 v22, 0, v22, vcc")
    for b in VF_:
        for i in range(8):
            a(f"v_mov_b32 v{b+i}, v22")
    a(f"v_and_b32 v21, 15, v{VL}")
    a("v_lshlrev_b32 v21, 4, v21")
    a(f"v_lshl_add_u32 v{VVB}, v{VHI}, 8, v21")
    a("s_mov_b32 s68, 0x0000ffff")
    a("s_mov_b32 s69, 0x0000ffff")
    a("s_cmp_lg_u32 s44, 0")
    a("s_cbranch_scc1 A_WAITGO")
    a(f"v_lshlrev_b32 v19, 3, v{VL}")
    a("s_lshl_b32 s52, s47, 9")
    a(f"s_add_u32 s52, s52, {hex(WS_FL)}")
    a("s_add_u32 s53, s52, 0x4000")
    a("s_add_u32 s54, s52, 0x8000")
    a("s_lshl_b32 s55, s48, 6")
    a("s_add_u32 s52, s52, s55")
    a("v_and_b32 v20, 56, v19")
    a("A_POLL:")
    a(f"buffer_load_dwordx2 v[24:25], v19, s[28:31], s53 offen sc1")
    a(f"buffer_load_dwordx2 v[26:27], v19, s[28:31], s54 offen sc1")
    a(f"buffer_load_dwordx2 v[28:29], v20, s[28:31], s52 offen sc1")
    a("s_waitcnt vmcnt(0)")
    a("v_cmp_ne_u32 vcc, s49, v24")
    a("v_cmp_ne_u32 s[66:67], s49, v26")
    a("s_or_b64 vcc, vcc, s[66:67]")
    a("v_cmp_ne_u32 s[66:67], s49, v28")
    a("s_or_b64 vcc, vcc, s[66:67]")
    a("s_cbranch_scc0 A_POLLED")
    budget(a, 16, "A_POLLED")
    a("s_sleep 4")
    a("s_branch A_POLL")
    a("A_POLLED:")
    for sh in (1, 2, 4, 8):
        a(f"v_max_f32_dpp v25, v25, v25 row_shr:{sh} row_mask:0xf bank_mask:0xf")
    a("v_max_f32_dpp v25, v25, v25 row_bcast:15 row_mask:0xa bank_mask:0xf")
    a("v_max_f32_dpp v25, v25, v25 row_bcast:31 row_mask:0xc bank_mask:0xf")
    a("v_mov_b32 v24, 1")
    a("s_mov_b32 exec_lo, 0")
    a("s_mov_b32 exec_hi, 0x80000000")
    a(f"ds_write_b64 v{VS}, v[24:25] offset:{O_GO}")
    a("s_mov_b64 exec, -1")
    a("A_WAITGO:")
    a("A_GOL:")
    a(f"ds_read_b64 v[24:25], v{VS} offset:{O_GO}")
    a("s_waitcnt lgkmcnt(0)")
    a("v_readfirstlane_b32 s66, v24")
    a("s_cmp_lg_u32 s66, 0")
    a("s_cbranch_scc1 A_GO")
    budget(a, 1, "A_GO")
    a("s_sleep 2")
    a("s_branch A_GOL")
    a("A_GO:")
    stamp(a, 5)
    a("v_readfirstlane_b32 s61, v25")
    a(f"buffer_load_dwordx4 {vr(Q,4)}, v{VL16}, s[28:31], s57 offen sc1")
    def kvload(r):
        a(f"buffer_load_dwordx4 {vr(r,4)}, v{VL16}, s[28:31], s62 offen sc1")
        a(f"buffer_load_dwordx4 {vr(r+4,4)}, v{VL16}, s[28:31], s63 offen sc1")
        a("s_add_u32 s62, s62, 8192")
        a("s_add_u32 s63, s63, 8192")
    def kvwrite(r):
        a(f"ds_write_b128 v{KW}, {vr(r,4)}")
        a(f"ds_write_b128 v{KW}, {vr(r+4,4)} offset:8192")
        a(f"v_add_u32 v{KW}, 0x4000, v{KW}")
    kvload(S[0]); kvload(S[0] + 8); kvload(STG)
    lds_wait(a, O_GC, "36", sleep=2)
    a("s_waitcnt vmcnt(6)")
    a(f"v_dot2_f32_bf16 v{M}, v{Q}, v{Q}, 0")
    for i in range(1, 4):
        a(f"v_dot2_f32_bf16 v{M}, v{Q+i}, v{Q+i}, v{M}")
    a(f"v_mov_b32 v13, v{M}")
    a(f"v_permlane32_swap_b32 v{M}, v13")
    a(f"v_add_f32 v{M}, v{M}, v13")
    a(f"v_mul_f32 v{M}, s61, v{M}")
    a(f"v_sqrt_f32 v{M}, v{M}")
    a(f"v_mul_f32 v{M}, 0xbf820000, v{M}")
    for i in range(16): a(f"v_mov_b32 v{C+i}, v{M}")
    for i in range(16): a(f"v_mov_b32 v{O+i}, 0")
    a(f"v_mov_b32 v{KA}, v{VL16}")
    a(f"v_add_u32 v{VA}, 0x2000, v{VVB}")
    for i in range(4): a(f"v_mov_b32 v{P+4+i}, 0")
    a("s_waitcnt vmcnt(2)")
    kvwrite(S[0]); kvwrite(S[0] + 8)
    lds_arrive(a, O_AC)
    a("s_mov_b32 s52, 8")
    a("s_mov_b32 s53, 52")
    a("s_mov_b32 s54, 0")
    lds_wait(a, O_AC, "s52", sleep=1)
    stamp(a, 6)
    def off(t): return (t // 8) * 16384 + (t % 8) * 1024
    def rdK(t):
        a(f"ds_read_b128 {vr(KF_[t%2],4)}, v{KA} offset:{off(t)}")
    def rdV(t):
        a("s_mov_b64 exec, s[68:69]")
        a(f"ds_read_b128 {vr(VF_[t%2],4)}, v{VA} offset:{off(t)}")
        a(f"ds_read_b128 {vr(VF_[t%2]+4,4)}, v{VA} offset:{off(t)+512}")
        a("s_mov_b64 exec, -1")
    def mS(t):
        a(f"v_mfma_f32_32x32x16_bf16 {vr(S[t%2],16)}, {vr(KF_[t%2],4)}, {vr(Q,4)}, {vr(C,16)}")
    def mPV(t, j):
        a(f"v_mfma_f32_32x32x16_bf16 {vr(O,16)}, {vr(VF_[t%2]+4*j,4)}, {vr(P+4*j,4)}, {vr(O,16)}")
    def ex(t, i):
        a(f"v_exp_f32 v{S[t%2]+i}, v{S[t%2]+i}")
    def cv(t, i):
        a(f"v_cvt_pk_bf16_f32 v{P+i}, v{S[t%2]+2*i}, v{S[t%2]+2*i+1}")
    rdK(0); rdK(1); rdV(0)
    a("s_waitcnt lgkmcnt(3)")
    mS(0)
    a("s_nop 7"); a("s_nop 3")
    a("A_LOOP:")
    for t in range(8):
        if t == 4:
            lds_wait(a, O_AC, "s52", sleep=1)
            a("s_add_u32 s52, s52, 8")
            a("s_cmp_ge_u32 s54, 6")
            a("s_cbranch_scc1 A_NOW")
            lds_wait(a, O_GC, "s53", sleep=1)
            a("s_add_u32 s53, s53, 16")
            a("s_waitcnt vmcnt(0)")
            kvwrite(STG)
            a("s_cmp_ge_u32 s54, 5")
            a("s_cbranch_scc1 A_NOW")
            a("s_waitcnt lgkmcnt(0)")
            kvload(STG)
            a("A_NOW:")
            lds_arrive(a, O_AC)
            a("s_waitcnt lgkmcnt(0)")
        ex(t, 0); ex(t, 1)
        mPV(t - 1, 1)
        ex(t, 2); ex(t, 3); ex(t, 4)
        a("s_waitcnt lgkmcnt(2)")
        mS(t + 1)
        rdK(t + 2); rdV(t + 1)
        ex(t, 5); ex(t, 6); ex(t, 7); ex(t, 8)
        for i in range(4): cv(t, i)
        ex(t, 9); ex(t, 10); ex(t, 11)
        a("s_waitcnt lgkmcnt(3)")
        mPV(t, 0)
        for i in range(12, 16): ex(t, i)
        for i in range(4, 8): cv(t, i)
    a(f"v_add_u32 v{KA}, 0x4000, v{KA}")
    a(f"v_add_u32 v{VA}, 0x4000, v{VA}")
    a("s_add_u32 s54, s54, 1")
    a("s_cmp_lt_u32 s54, 8")
    a("s_cbranch_scc1 A_LOOP")
    mPV(7, 1)
    a("s_waitcnt lgkmcnt(0)")
    a(f"v_cmp_le_f32 vcc, 0x21800000, v{O+8}")
    a("s_cmp_eq_u64 vcc, -1")
    a("s_cbranch_scc1 A_FIN")
    a(f"s_add_u32 s62, s56, {hex(WS_KF)}")
    a("s_mov_b32 s54, 0")
    a(f"v_mov_b32 v{M}, 0xff800000")
    a("A_MAXL:")
    a(f"buffer_load_dwordx4 {vr(KF_[0],4)}, v{VL16}, s[28:31], s62 offen sc1")
    a("s_waitcnt vmcnt(0)")
    a(f"v_mfma_f32_32x32x16_bf16 {vr(S[0],16)}, {vr(KF_[0],4)}, {vr(Q,4)}, 0")
    a("s_add_u32 s62, s62, 1024")
    for i in range(8):
        a(f"v_max3_f32 v{M}, v{S[0]+2*i}, v{S[0]+2*i+1}, v{M}")
    a("s_add_u32 s54, s54, 1")
    a("s_cmp_lt_u32 s54, 64")
    a("s_cbranch_scc1 A_MAXL")
    a(f"v_mov_b32 v13, v{M}")
    a(f"v_permlane32_swap_b32 v{M}, v13")
    a(f"v_max_f32 v{M}, v{M}, v13")
    a(f"v_mul_f32 v{M}, -1.0, v{M}")
    for i in range(16): a(f"v_mov_b32 v{C+i}, v{M}")
    for i in range(16): a(f"v_mov_b32 v{O+i}, 0")
    a(f"s_add_u32 s62, s56, {hex(WS_KF)}")
    a(f"s_add_u32 s63, s56, {hex(WS_VF)}")
    a("s_mov_b32 s54, 0")
    a("A_FBL:")
    a(f"buffer_load_dwordx4 {vr(KF_[0],4)}, v{VL16}, s[28:31], s62 offen sc1")
    a("s_mov_b64 exec, s[68:69]")
    a(f"buffer_load_dwordx4 {vr(VF_[0],4)}, v{VVB}, s[28:31], s63 offen sc1")
    a(f"buffer_load_dwordx4 {vr(VF_[0]+4,4)}, v{VVB}, s[28:31], s63 offen offset:512 sc1")
    a("s_mov_b64 exec, -1")
    a("s_waitcnt vmcnt(0)")
    mS(0)
    a("s_add_u32 s62, s62, 1024")
    a("s_add_u32 s63, s63, 1024")
    for i in range(16): ex(0, i)
    for i in range(8): cv(0, i)
    mPV(0, 0); mPV(0, 1)
    a("s_nop 7"); a("s_nop 7")
    a("s_add_u32 s54, s54, 1")
    a("s_cmp_lt_u32 s54, 64")
    a("s_cbranch_scc1 A_FBL")
    a("A_FIN:")
    stamp(a, 7)
    a(f"v_rcp_f32 v13, v{O+8}")
    for i in range(8):
        a(f"v_mul_f32 v{O+i}, v{O+i}, v13")
    for i in range(4):
        a(f"v_cvt_pk_bf16_f32 v{P+i}, v{O+2*i}, v{O+2*i+1}")
    a("s_lshl_b32 s62, s59, 15")
    a("s_lshl_b32 s63, s47, 10")
    a("s_add_u32 s62, s62, s63")
    a(f"s_add_u32 s62, s62, {hex(WS_OF)}")
    a(f"buffer_store_dwordx4 {vr(P,4)}, v{VL16}, s[28:31], s62 offen sc1")
    a("s_lshl_b32 s62, s59, 7")
    a("s_lshl_b32 s63, s47, 2")
    a("s_add_u32 s62, s62, s63")
    a(f"s_add_u32 s62, s62, {hex(WS_FO)}")
    a("v_mov_b32 v21, s49")
    a("v_mov_b32 v22, 0")
    a("s_waitcnt vmcnt(0)")
    a("s_mov_b64 exec, 1")
    a("buffer_store_dword v21, v22, s[28:31], s62 offen sc1")
    if STAMP:
        a("s_waitcnt vmcnt(0)")
        stamp(a, 11)
        stamp_out(a)
    a("s_endpgm")

def build(path, dump=False):
    a = Asm()
    ks = [gen_main(a)]
    if dump: ks.append(gen_dump(a))
    out = []
    if dump:
        for (n, v, (g, b, l)) in ks:
            out.append(f"; @launch kernel={n} grid=({g},1,1) block=({b},1,1) lds={l}")
    else:
        n, v, (g, b, l) = ks[0]
        out.append(f"; @launch grid=({g},1,1) block=({b},1,1) lds={l}")
    out.append('.amdgcn_target "amdgcn-amd-amdhsa--gfx950"')
    out.append(".text")
    out.append(a.text())
    out.append('.section .rodata,"a"')
    for (n, v, _) in ks:
        out.append(kd(n, v))
    open(path, "w").write("\n".join(out))

if __name__ == "__main__":
    path = sys.argv[1]
    args = sys.argv[2:]
    STAMP = "stamp" in args or "dump" in args
    build(path, dump="dump" in args)
```

```python
import sys
from asmlib import *

WS_QF = 0x000000; WS_KF = 0x200000; WS_VF = 0x400000; WS_OF = 0x600000
WS_BP = 0x800000; WS_HF = 0xA00000; WS_G = 0x1100000; WS_ST = 0x1200000
WS_SIZE = 0x2000000
QSCALE = 0x3eb8aa3b
SPIN = 1 << 20

STAMP = False
OPT = dict(sc1=0, touch=0, yp=52, gprio=2, k3ns=8)

def srd(a, sbase, sptr, size):
    a(f"s_mov_b32 s{sbase}, s{sptr}")
    a(f"s_mov_b32 s{sbase+1}, s{sptr+1}")
    a(f"s_mov_b32 s{sbase+2}, {hex(size)}")
    a(f"s_mov_b32 s{sbase+3}, 0x00020000")

def header(a, name):
    a(f".globl {name}"); a(".p2align 8"); a(f".type {name},@function"); a(f"{name}:")

def kd(name, vgpr, sgpr=102):
    acc = (vgpr + 3) // 4 * 4
    return f""".p2align 6
.amdhsa_kernel {name}
  .amdhsa_next_free_vgpr {vgpr}
  .amdhsa_next_free_sgpr {sgpr}
  .amdhsa_accum_offset {acc}
  .amdhsa_group_segment_fixed_size 0
  .amdhsa_kernarg_size 88
  .amdhsa_user_sgpr_count 2
  .amdhsa_user_sgpr_kernarg_segment_ptr 1
  .amdhsa_system_sgpr_workgroup_id_x 1
.end_amdhsa_kernel
"""

NST = 12
def stamp(a, i):
    if not STAMP: return
    a("s_memrealtime s[76:77]")
    a("s_waitcnt lgkmcnt(0)")
    a(f"s_mov_b32 s{78+i}, s76")
def stamp_init(a):
    if not STAMP: return
    for i in range(NST): a(f"s_mov_b32 s{78+i}, 0")
def stamp_out(a, k):
    if not STAMP: return
    a("s_mov_b64 exec, 1")
    a("s_lshl_b32 s72, s2, 10")
    a("s_lshl_b32 s73, s44, 6")
    a("s_add_u32 s72, s72, s73")
    a(f"s_add_u32 s72, s72, {hex(WS_ST + k*0x40000)}")
    a("v_mov_b32 v0, 0")
    for i in range(NST):
        a(f"v_mov_b32 v2, s{78+i}")
        a(f"buffer_store_dword v2, v0, s[28:31], s72 offen offset:{4*i}")
        a("s_nop 1")

_uid = [0]
def uid(p):
    _uid[0] += 1
    return f"{p}_{_uid[0]}"

class Cnt:
    def __init__(self, name, mx): self.n = 0; self.tags = {}; self.done = 0; self.name = name; self.mx = mx
    def issue(self, tag=None):
        self.n += 1
        if tag is not None: self.tags[tag] = self.n
    def cnt(self, tag): return self.n - self.tags[tag]
    def wait(self, a, *tags):
        t = max(self.tags[x] for x in tags)
        if t <= self.done: return
        c = min(self.n - t, self.mx)
        a(f"s_waitcnt {self.name}({c})")
        self.done = self.n - c
    def wait_all(self, a):
        if self.done >= self.n: return
        a(f"s_waitcnt {self.name}(0)"); self.done = self.n
def LG(): return Cnt("lgkmcnt", 15)
def VM(): return Cnt("vmcnt", 63)

def budget(a, n, D):
    a(f"s_sub_u32 s3, s3, {n}")
    a("s_cmp_lt_i32 s3, 0")
    a(f"s_cbranch_scc1 {D}")
def lds_wait(a, off, target, vs, vt, sleep=1, stmp="s70"):
    L = uid("LW"); D = uid("LD")
    a(f"{L}:")
    a(f"ds_read_b32 v{vt}, v{vs} offset:{off}")
    a("s_waitcnt lgkmcnt(0)")
    a(f"v_readfirstlane_b32 {stmp}, v{vt}")
    a(f"s_cmp_ge_u32 {stmp}, {target}")
    a(f"s_cbranch_scc1 {D}")
    budget(a, 1, D)
    if sleep: a(f"s_sleep {sleep}")
    a(f"s_branch {L}")
    a(f"{D}:")
def lds_arrive(a, off, vs, vone):
    a("s_mov_b64 exec, 1")
    a(f"ds_add_u32 v{vs}, v{vone} offset:{off}")
    a("s_mov_b64 exec, -1")

def SC(): return " sc1" if OPT['sc1'] else ""

XR = 0; WR = 49152
def gen_k1(a):
    N = "k1_kernel"
    header(a, N)
    a("s_cmp_ge_u32 s2, 256")
    a("s_cbranch_scc1 K1_END")
    a("s_load_dwordx4 s[4:7], s[0:1], 0")
    a("s_load_dwordx4 s[8:11], s[0:1], 32")
    a("s_load_dwordx2 s[14:15], s[0:1], 80")
    a("s_load_dwordx2 s[12:13], s[0:1], 56")
    a("v_lshrrev_b32 v2, 6, v0")
    a("v_and_b32 v1, 63, v0")
    a("v_readfirstlane_b32 s44, v2")
    a("s_and_b32 s50, s2, 7")
    a("s_lshr_b32 s51, s2, 3")
    a("s_and_b32 s45, s50, 1")
    a("s_lshl_b32 s45, s45, 3")
    a("s_and_b32 s52, s51, 7")
    a("s_add_u32 s45, s45, s52")
    a("s_lshr_b32 s46, s50, 1")
    a("s_lshr_b32 s47, s51, 3")
    a("s_mul_i32 s48, s46, 7")
    a("s_lshl_b32 s52, s47, 1")
    a("s_add_u32 s48, s48, s52")
    a("s_mul_i32 s49, s46, 3")
    a("s_add_u32 s52, s49, s47")
    a("s_add_u32 s53, s52, 16")
    a("s_add_u32 s54, s52, 4")
    a("s_cmp_lt_u32 s52, 8")
    a("s_cselect_b32 s53, s53, s54")
    a("s_add_u32 s54, s49, 2")
    a("s_cmp_eq_u32 s47, 3")
    a("s_cselect_b32 s53, s54, s53")
    a("s_cmp_ge_u32 s44, 4")
    a("s_cbranch_scc1 K1_COMP")
    VX = 4; VW = 8; V4 = 12; T0 = 13; T1 = 14; T2 = 15
    a(f"v_lshrrev_b32 v{T0}, 3, v1")
    a(f"v_and_b32 v{T1}, 7, v1")
    a(f"v_lshrrev_b32 v{T2}, 4, v1")
    a(f"v_xor_b32 v{T2}, v{T1}, v{T2}")
    a(f"v_lshlrev_b32 v{VX}, 10, v{T0}")
    a(f"v_lshl_add_u32 v{VX}, v{T2}, 4, v{VX}")
    a(f"v_xor_b32 v{VX+1}, 64, v{VX}")
    a(f"v_add_u32 v{VX+1}, 0x2000, v{VX+1}")
    a(f"v_add_u32 v{VX+2}, 0x4000, v{VX}")
    a(f"v_add_u32 v{VX+3}, 0x4000, v{VX+1}")
    a("s_lshl_b32 s55, s45, 17")
    a("s_lshl_b32 s56, s44, 15")
    a("s_add_u32 s55, s55, s56")
    a("s_lshl_b32 s56, s44, 12")
    a("s_and_b32 s52, s44, 1")
    a("s_add_u32 s58, s48, s52")
    a("s_cmp_eq_u32 s47, 3")
    a("s_cselect_b32 s58, s48, s58")
    a("s_cselect_b32 s59, 1, 0")
    a("s_andn2_b32 s59, s59, s52")
    a("s_lshr_b32 s52, s44, 1")
    a("s_add_u32 s52, s52, s49")
    a("s_movk_i32 s57, 3584")
    a("s_cmp_eq_u32 s59, 1")
    a("s_cselect_b32 s58, s52, s58")
    a("s_cselect_b32 s57, 3072, s57")
    a("s_lshl_b32 s58, s58, 7")
    a(f"v_bfe_u32 v{T2}, v1, 4, 1")
    a(f"v_lshlrev_b32 v{T2}, 2, v{T2}")
    a(f"v_xor_b32 v{T1}, v{T1}, v{T2}")
    a(f"v_lshlrev_b32 v{T1}, 4, v{T1}")
    a(f"v_mad_u32_u24 v{VW}, v{T0}, s57, v{T1}")
    a("s_lshl_b32 s52, s57, 3")
    for p in range(1, 4): a(f"v_add_u32 v{VW+p}, s52, v{VW+p-1}")
    a("s_lshl_b32 s57, s57, 5")
    a(f"v_mul_u32_u24 v{V4}, 0xc00, v{T0}")
    a(f"v_add_u32 v{V4}, v{V4}, v{T1}")
    a("s_lshl_b32 s60, s53, 7")
    a("s_mul_i32 s52, s44, 24576")
    a("s_add_u32 s60, s60, s52")
    a("s_lshl_b32 s61, s44, 10")
    stamp_init(a)
    a("s_waitcnt lgkmcnt(0)")
    stamp(a, 0)
    srd(a, 24, 4, 0x200000)
    vm = VM()
    def xdma(c):
        for p in range(4):
            a(f"s_add_u32 m0, s56, {XR + (c % 3)*16384 + p*1024}")
            a(f"buffer_load_dwordx4 v{VX+p}, s[24:27], s55 offen lds"); vm.issue(("x", c))
        a("s_add_u32 s55, s55, 128")
    def wdma(d):
        for p in range(4):
            a(f"s_add_u32 m0, s56, {WR + (d % 5)*20480 + p*1024}")
            a(f"buffer_load_dwordx4 v{VW+p}, s[32:35], s58 offen lds"); vm.issue()
        a(f"s_add_u32 m0, s61, {WR + (d % 5)*20480 + 16384}")
        a(f"buffer_load_dwordx4 v{V4}, s[36:39], s60 offen lds"); vm.issue(("w", d))
        a("s_add_u32 s58, s58, s57")
        a("s_add_u32 s60, s60, 98304")
    xdma(0)
    srd(a, 32, 8, 0x1c0000)
    a("s_cmp_lt_u32 s44, 2")
    a("s_cbranch_scc1 K1_LG")
    a("s_mov_b32 s32, s10")
    a("s_mov_b32 s33, s11")
    a("K1_LG:")
    a("s_cmp_eq_u32 s59, 0")
    a("s_cbranch_scc1 K1_LQ")
    a("s_mov_b32 s32, s6")
    a("s_mov_b32 s33, s7")
    a("s_mov_b32 s34, 0x180000")
    a("K1_LQ:")
    srd(a, 36, 6, 0x180000)
    wdma(0); wdma(1); xdma(1); wdma(2); wdma(3); xdma(2); wdma(4)
    stamp(a, 1)
    srd(a, 28, 14, WS_SIZE)
    srd(a, 40, 12, 1024)
    GA = 16; GX = 20; GW = 28
    a(f"v_and_b32 v{GA}, 31, v1")
    a(f"v_lshlrev_b32 v{GA}, 5, v{GA}")
    a(f"v_lshrrev_b32 v{GA+2}, 5, v1")
    a(f"v_lshl_add_u32 v{GA+1}, v{GA+2}, 10, v{GA}")
    a(f"v_lshlrev_b32 v{GA+2}, 2, v{GA+2}")
    a("s_lshl_b32 s62, s46, 2")
    a("s_add_u32 s62, s62, s47")
    a("s_lshl_b32 s62, s62, 3")
    a("s_lshl_b32 s63, s45, 7")
    a("s_add_u32 s62, s62, s63")
    a("s_lshl_b32 s63, s44, 1")
    a("s_add_u32 s62, s62, s63")
    a("s_lshl_b32 s63, s62, 10")
    a("s_lshl_b32 s62, s62, 2")
    a(f"s_add_u32 s62, s62, {hex(WS_G)}")
    for d in range(-1, 15):
        tags = [("w", d + 1)]
        if (d + 1) % 2 == 0: tags.append(("x", (d + 1) // 2))
        vm.wait(a, *tags)
        a("s_barrier")
        if d in (-1, 3, 7, 11): stamp(a, 2 + (d + 1) // 4)
        if d >= 0 and d + 5 <= 15:
            if d % 2 == 1: xdma((d + 5) // 2)
            wdma(d + 5)
        if d == 10:
            a(f"buffer_load_dwordx4 {vr(GX,4)}, v{GA+1}, s[24:27], s63 offen"); vm.issue()
            a(f"buffer_load_dwordx4 {vr(GX+4,4)}, v{GA+1}, s[24:27], s63 offen offset:16"); vm.issue()
            a(f"buffer_load_dwordx4 {vr(GW,4)}, v{GA}, s[40:43], 0 offen"); vm.issue()
            a(f"buffer_load_dwordx4 {vr(GW+4,4)}, v{GA}, s[40:43], 0 offen offset:16"); vm.issue()
    stamp(a, 6)
    a("v_mov_b32 v2, 0")
    a("s_waitcnt vmcnt(0)")
    for i in range(8):
        a(f"v_dot2_f32_bf16 v2, v{GX+i}, v{GW+i}, v2")
    for sh in (1, 2, 4, 8):
        a(f"v_add_f32_dpp v2, v2, v2 row_shr:{sh} row_mask:0xf bank_mask:0xf bound_ctrl:0")
    a("v_add_f32_dpp v2, v2, v2 row_bcast:15 row_mask:0xa bank_mask:0xf")
    a("v_cvt_pk_bf16_f32 v2, v2, v2")
    a("v_and_b32 v2, 0xffff0000, v2")
    a("v_mul_f32 v2, 0xbfb8aa3b, v2")
    a("v_exp_f32 v2, v2")
    a("v_add_f32 v2, 1.0, v2")
    a("v_rcp_f32 v2, v2")
    a("v_cvt_pk_bf16_f32 v2, v2, v2")
    a("v_and_b32 v2, 0xffff0000, v2")
    a("s_mov_b32 s64, 0x80000000")
    a("s_mov_b32 s65, 0x80000000")
    a("s_mov_b64 exec, s[64:65]")
    a(f"buffer_store_dword v2, v{GA+2}, s[28:31], s62 offen{SC()}")
    if STAMP:
        a("s_waitcnt vmcnt(0)")
        stamp(a, 7)
        stamp_out(a, 0)
    a("s_endpgm")
    a("K1_COMP:")
    a("s_setprio 1")
    L16 = 2; L16B = 3; XA = 4; TR = 8; VVS = 14; T0 = 15
    F = [16, 44]; ACC = 72; T1 = 72; T2 = 73; HI = 74
    a("s_and_b32 s55, s44, 1")
    a("s_bfe_u32 s56, s44, 0x10001")
    a(f"v_lshrrev_b32 v{HI}, 5, v1")
    a(f"v_and_b32 v{T0}, 31, v1")
    a(f"v_bfe_u32 v{T1}, v{T0}, 1, 3")
    a(f"v_xor_b32 v{T1}, v{T1}, v{HI}")
    a(f"v_lshlrev_b32 v{T1}, 4, v{T1}")
    a(f"v_lshl_add_u32 v{T1}, v{T0}, 7, v{T1}")
    a("s_lshl_b32 s52, s55, 13")
    a(f"v_add_u32 v{XA}, s52, v{T1}")
    for q in range(1, 4): a(f"v_xor_b32 v{XA+q}, {32*q}, v{XA}")
    a(f"v_bfe_u32 v{T0}, v1, 2, 2")
    a(f"v_lshlrev_b32 v{T0}, 7, v{T0}")
    a(f"v_lshl_add_u32 v{T0}, v{HI}, 10, v{T0}")
    a(f"v_bfe_u32 v{T1}, v1, 3, 1")
    a(f"v_lshl_add_u32 v{T0}, v{T1}, 6, v{T0}")
    a(f"v_bfe_u32 v{T1}, v1, 4, 1")
    a(f"v_lshl_add_u32 v{T0}, v{T1}, 5, v{T0}")
    a(f"v_and_b32 v{T2}, 3, v1")
    a(f"v_lshl_add_u32 v{T0}, v{T2}, 3, v{T0}")
    a("s_lshl_b32 s52, s56, 12")
    a(f"s_add_u32 s52, s52, {WR}")
    a(f"v_add_u32 v{TR}, s52, v{T0}")
    a(f"v_xor_b32 v{TR+1}, 64, v{TR}")
    a("s_lshl_b32 s52, s56, 6")
    a(f"v_xor_b32 v{T0}, s52, v{T0}")
    a(f"v_add_u32 v{TR+2}, {WR + 16384}, v{T0}")
    for i in range(3): a(f"v_add_u32 v{TR+3+i}, {61440}, v{TR+i}")
    a(f"v_lshlrev_b32 v{L16}, 4, v1")
    a(f"v_add_u32 v{L16B}, 0x10000, v{L16}")
    a(f"v_lshlrev_b32 v{T1}, 16, v{T1}")
    a(f"v_lshl_add_u32 v{T1}, v{HI}, 8, v{T1}")
    a(f"v_and_b32 v{T2}, 15, v1")
    a(f"v_lshl_add_u32 v{VVS}, v{T2}, 4, v{T1}")
    a("s_lshl_b32 s57, s45, 2")
    a("s_lshl_b32 s52, s55, 1")
    a("s_add_u32 s57, s57, s52")
    a("s_add_u32 s52, s48, s56")
    a("s_cmp_eq_u32 s47, 3")
    a("s_cselect_b32 s52, s48, s52")
    a("s_lshl_b32 s52, s52, 12")
    a("s_mul_i32 s58, s57, 114688")
    a("s_add_u32 s58, s58, s52")
    a(f"s_add_u32 s58, s58, {hex(WS_HF)}")
    a("s_add_u32 s59, s58, 114688")
    a("s_lshl_b32 s57, s57, 10")
    a("s_lshl_b32 s52, s53, 1")
    a("s_add_u32 s52, s52, s56")
    a("s_lshl_b32 s52, s52, 17")
    a("s_add_u32 s60, s52, s57")
    a("s_mul_i32 s52, s46, 786432")
    a("s_add_u32 s61, s52, s57")
    a("s_add_u32 s62, s61, 0x20000")
    a("s_add_u32 s63, s61, 0x40000")
    a("s_add_u32 s64, s61, 0x60000")
    a(f"s_mov_b32 s52, {hex(QSCALE)}")
    a("s_cmp_lt_u32 s53, 8")
    a("s_cselect_b32 s66, s52, 1.0")
    a("s_cmp_lt_u32 s49, 8")
    a("s_cselect_b32 s68, s52, 1.0")
    a("s_cmp_lt_u32 s49, 7")
    a("s_cselect_b32 s70, s52, 1.0")
    a("s_mov_b32 s67, s66"); a("s_mov_b32 s69, s68"); a("s_mov_b32 s71, s70")
    stamp_init(a)
    a("s_waitcnt lgkmcnt(0)")
    stamp(a, 0)
    srd(a, 28, 14, WS_SIZE)
    a("s_cmp_ge_u32 s53, 16")
    a("s_cbranch_scc1 K1_CV")

    def reads(k):
        f = F[k % 2]; d = k // 2; ds = d % 5
        xo = XR + ((k // 4) % 3) * 16384
        wo = ds * 20480 + (k % 2) * 2048
        tb_ = TR
        if ds >= 3: wo -= 61440; tb_ = TR + 3
        out = []
        def x(t): out.append((f"ds_read_b128 {vr(f+4*t,4)}, v{XA + k%4} offset:{xo + t*4096}", ("x", k, t)))
        def w(i):
            r = tb_ + (i % 2 if i < 4 else 2); o = wo + (8192 if i in (2, 3) else 0)
            out.append((f"ds_read_b64_tr_b16 {vr(f+8+4*i,2)}, v{r} offset:{o}", None))
            out.append((f"ds_read_b64_tr_b16 {vr(f+10+4*i,2)}, v{r} offset:{o+512}", ("w", k, i)))
        x(0); w(0); x(1); w(1); w(2); w(3); w(4)
        return out
    def mfma(k, i, t, var):
        f = F[k % 2]; acc = vr(ACC + 16*(2*i + t), 16)
        X = vr(f + 4*t, 4); W = vr(f + 8 + 4*i, 4)
        A, B = (X, W) if (var == "V" and i == 4) else (W, X)
        return f"v_mfma_f32_32x32x16_bf16 {acc}, {A}, {B}, {'0' if k == 0 else acc}"
    def epi_T(i, t, sscale, soff):
        A = ACC + 16*(2*i + t); out = []
        for j in range(8): out.append(f"v_pk_mul_f32 {vr(A+2*j,2)}, {vr(A+2*j,2)}, {sr(sscale,2)}")
        for j in range(8): out.append(f"v_cvt_pk_bf16_f32 v{A+j}, v{A+2*j}, v{A+2*j+1}")
        out.append(f"buffer_store_dwordx4 {vr(A,4)}, v{L16}, s[28:31], s{soff} offen offset:{t*1024}{SC()}")
        out.append(f"buffer_store_dwordx4 {vr(A+4,4)}, v{L16B}, s[28:31], s{soff} offen offset:{t*1024}{SC()}")
        return out
    def epi_V(i, t, soff):
        A = ACC + 16*(2*i + t); out = []
        for j in range(8): out.append(f"v_cvt_pk_bf16_f32 v{A+j}, v{A+2*j}, v{A+2*j+1}")
        out.append(f"buffer_store_dwordx4 {vr(A,4)}, v{VVS}, s[28:31], s{soff} offen offset:{t*1024}{SC()}")
        out.append(f"buffer_store_dwordx4 {vr(A+4,4)}, v{VVS}, s[28:31], s{soff} offen offset:{t*1024+512}{SC()}")
        return out
    def epi_H(ct, t):
        A = ACC + 16*(2*ct + t); U = ACC + 16*(2*(ct+2) + t); out = []
        for j in range(8): out.append(f"v_pk_mul_f32 {vr(A+2*j,2)}, {vr(A+2*j,2)}, {vr(U+2*j,2)}")
        for j in range(8): out.append(f"v_cvt_pk_bf16_f32 v{A+j}, v{A+2*j}, v{A+2*j+1}")
        out.append(f"buffer_store_dwordx4 {vr(A,4)}, v{L16}, s[28:31], s{58+t} offen offset:{ct*2048}{SC()}")
        out.append(f"buffer_store_dwordx4 {vr(A+4,4)}, v{L16}, s[28:31], s{58+t} offen offset:{ct*2048+1024}{SC()}")
        return out
    def final(lg, var, kind):
        import copy
        lg = copy.deepcopy(lg)
        rd = reads(31)
        rd = [rd[0], rd[3], rd[10], rd[11], rd[1], rd[2], rd[6], rd[7], rd[4], rd[5], rd[8], rd[9]]
        seq = [(30,4,0), (30,4,1), (30,0,0), (30,2,0), (31,4,0), (31,4,1), (31,0,0), (31,2,0),
               (30,0,1), (30,2,1), (31,0,1), (31,2,1),
               (30,1,0), (30,3,0), (31,1,0), (31,3,0),
               (30,1,1), (30,3,1), (31,1,1), (31,3,1)]
        ez = (lambda t: epi_V(4, t, 60)) if var == "V" else (lambda t: epi_T(4, t, 66, 60))
        if kind == "H":
            eh = lambda ct, t: epi_H(ct, t)
        else:
            eh = lambda ct, t: epi_T(ct, t, 68, 61 + ct) + epi_T(ct + 2, t, 70, 63 + ct)
        q = [(6, ez(0)), (7, ez(1)), (9, eh(0, 0)), (13, eh(0, 1)), (17, eh(1, 0)), (99, eh(1, 1))]
        pend = []
        per = 6 if kind == "H" else 9
        for n, (k, i, t) in enumerate(seq):
            lg.wait(a, ("x", k, t), ("w", k, i))
            a(mfma(k, i, t, var))
            for _ in range(3):
                if rd:
                    s, tag = rd.pop(0); a(s); lg.issue(tag)
            while q and q[0][0] <= n: pend += q.pop(0)[1]
            for _ in range(per):
                if pend: a(pend.pop(0))
        for _, l in q: pend += l
        for s in pend: a(s)
        if STAMP:
            stamp(a, 6)
            a("s_waitcnt vmcnt(0)")
            stamp(a, 7)
            stamp_out(a, 0)
        a("s_endpgm")
    for var in "TV":
        if var == "V": a("K1_CV:")
        lg = LG()
        a("s_barrier")
        stamp(a, 1)
        for s, tag in reads(0): a(s); lg.issue(tag)
        for k in range(30):
            rd = reads(k + 1)
            n = 0
            for i in range(5):
                for t in range(2):
                    lg.wait(a, ("x", k, t), ("w", k, i))
                    a(mfma(k, i, t, var))
                    if k % 2 == 1 and n == 1:
                        lg.wait_all(a)
                        a("s_barrier")
                        if k in (7, 15, 23, 29) and STAMP:
                            stamp(a, {7: 2, 15: 3, 23: 4, 29: 5}[k])
                    if k % 2 == 0 or n >= 1:
                        for _ in range(2):
                            if rd:
                                s, tag = rd.pop(0); a(s); lg.issue(tag)
                    n += 1
            assert not rd
        if var == "T":
            a("s_cmp_eq_u32 s47, 3")
            a("s_cselect_b32 s52, 0, 1")
            a("s_or_b32 s52, s52, s56")
            a("s_cmp_eq_u32 s52, 0")
            a("s_cbranch_scc1 K1_FQ")
            final(lg, "T", "H")
            a("K1_FQ:")
            final(lg, "T", "Q")
        else:
            final(lg, "V", "H")
    a("K1_END:")
    a("s_endpgm")
    return N, 232, (256, 512, 151552)

GRING = 131072; SYNC = GRING + 28672
O_AC = 0
O_GC = 8
O_MF = 16
VL = 1; VL16 = 2; VS = 3; VONE = 4; VHI = 5; VT = 6; VT2 = 7
AQ = [8, 12]; KA = [16, 17]; VA = [18, 19]; KW = 20; VVB = 21; AT0 = 22; AT1 = 23
AC = [24, 40]; AS = [56, 72]; AO = [88, 104]; AK = [120, 124]; AV = [128, 136]; AP = [144, 152]

def gen_k2(a):
    N = "k2_kernel"
    header(a, N)
    a("s_cmp_ge_u32 s2, 256")
    a("s_cbranch_scc1 K2_END")
    a("s_load_dwordx2 s[10:11], s[0:1], 80")
    a("s_load_dwordx2 s[16:17], s[0:1], 48")
    a("v_lshrrev_b32 v8, 6, v0")
    a(f"v_and_b32 v{VL}, 63, v0")
    a("v_readfirstlane_b32 s44, v8")
    a("s_and_b32 s50, s2, 7")
    a("s_lshr_b32 s51, s2, 3")
    a("s_lshl_b32 s47, s50, 2")
    a("s_and_b32 s52, s51, 3")
    a("s_add_u32 s47, s47, s52")
    a("s_lshr_b32 s48, s51, 2")
    a(f"v_lshlrev_b32 v{VL16}, 4, v{VL}")
    a(f"s_mov_b32 s3, {SPIN}")
    a("s_cmp_ge_u32 s44, 8")
    a("s_cbranch_scc1 K2_G")
    gen_attn(a)
    a("K2_G:")
    gen_down(a)
    a("K2_END:")
    a("s_endpgm")
    return N, 168, (256, 768, 163840)

def gen_attn(a):
    C = AC; S = AS; O = AO; KF_ = AK; VF_ = AV; P = AP; Q = AQ
    a("s_and_b32 s53, s44, 3")
    a("s_lshr_b32 s52, s44, 2")
    a("s_lshl_b32 s63, s53, 1")
    a("s_add_u32 s63, s63, s52")
    a("s_lshl_b32 s64, s48, 3")
    a("s_add_u32 s63, s63, s64")
    a("s_lshl_b32 s56, s47, 16")
    a("s_lshl_b32 s57, s63, 10")
    a("s_add_u32 s57, s57, s56")
    a("s_xor_b32 s58, s57, 1024")
    a("s_lshl_b32 s59, s52, 15")
    a("s_add_u32 s56, s56, s59")
    a(f"s_add_u32 s56, s56, {hex(WS_KF)}")
    a("s_lshl_b32 s59, s53, 10")
    a("s_add_u32 s62, s56, s59")
    a("s_add_u32 s61, s62, 0x200000")
    a("s_lshl_b32 s66, s52, 13")
    a("s_add_u32 s60, s66, s59")
    a("s_mov_b32 m0, s60")
    stamp_init(a)
    a("s_waitcnt lgkmcnt(0)")
    stamp(a, 0)
    srd(a, 28, 10, WS_SIZE)
    vm = VM()
    T0 = S[1]
    a(f"buffer_load_dwordx4 {vr(T0,4)}, v{VL16}, s[28:31], s62 offen"); vm.issue()
    a(f"buffer_load_dwordx4 {vr(Q[0],4)}, v{VL16}, s[28:31], s57 offen"); vm.issue()
    a(f"buffer_load_dwordx4 {vr(Q[1],4)}, v{VL16}, s[28:31], s58 offen"); vm.issue("q")
    for s in range(8):
        a(f"buffer_load_dwordx4 v{VL16}, s[28:31], s62 offen lds"); vm.issue()
        a(f"s_add_u32 m0, m0, 4096")
        a(f"buffer_load_dwordx4 v{VL16}, s[28:31], s61 offen lds"); vm.issue(("st", s))
        if s < 7:
            a(f"s_add_u32 m0, m0, 12288")
            a("s_add_u32 s62, s62, 4096")
            a("s_add_u32 s61, s61, 4096")
    stamp(a, 1)
    a(f"v_mov_b32 v{VS}, {SYNC}")
    a(f"v_mov_b32 v{VONE}, 1")
    a(f"v_lshrrev_b32 v{VHI}, 5, v{VL}")
    a(f"v_and_b32 v{VT}, 27, v{VL}")
    a(f"v_mov_b32 v{VT2}, 0x3f803f80")
    a(f"v_cmp_eq_u32 vcc, 16, v{VT}")
    a(f"v_cndmask_b32 v{VT2}, 0, v{VT2}, vcc")
    for i in range(16): a(f"v_mov_b32 v{VF_[0]+i}, v{VT2}")
    a(f"v_add_u32 v{KA[0]}, s66, v{VL16}")
    a(f"v_add_u32 v{KA[1]}, 0x10000, v{KA[0]}")
    a(f"v_and_b32 v{VT}, 15, v{VL}")
    a(f"v_lshlrev_b32 v{VT}, 4, v{VT}")
    a(f"v_lshl_add_u32 v{VVB}, v{VHI}, 8, v{VT}")
    a("s_add_u32 s67, s66, 4096")
    a(f"v_add_u32 v{VA[0]}, s67, v{VVB}")
    a(f"v_add_u32 v{VA[1]}, 0x10000, v{VA[0]}")
    a("s_mov_b32 s68, 0x0000ffff")
    a("s_mov_b32 s69, 0x0000ffff")
    a("s_lshl_b32 s66, s52, 2")
    a(f"v_add_u32 v0, s66, v{VS}")
    a("s_lshl_b32 s64, s63, 15")
    a("s_lshl_b32 s65, s47, 10")
    a("s_add_u32 s64, s64, s65")
    a(f"s_add_u32 s64, s64, {hex(WS_OF)}")
    a("s_cmp_lg_u32 s44, 0")
    a("s_cbranch_scc1 A_NOZ")
    a(f"v_mov_b32 v{VT}, 0")
    a(f"v_lshl_add_u32 v{VT2}, v{VL}, 2, v{VS}")
    a(f"ds_write_b32 v{VT2}, v{VT}")
    a("A_NOZ:")
    vm.wait(a, "q")
    stamp(a, 2)
    a(f"v_mfma_f32_32x32x16_bf16 {vr(C[0],16)}, {vr(T0,4)}, {vr(Q[0],4)}, 0")
    a(f"v_mfma_f32_32x32x16_bf16 {vr(C[1],16)}, {vr(T0,4)}, {vr(Q[1],4)}, 0")
    for h in range(2):
        m = AT0 + h
        a(f"v_max3_f32 v{m}, v{C[h]}, v{C[h]+1}, v{C[h]+2}")
        for i in range(3, 15, 2):
            a(f"v_max3_f32 v{m}, v{m}, v{C[h]+i}, v{C[h]+i+1}")
        a(f"v_max_f32 v{m}, v{m}, v{C[h]+15}")
        a(f"v_mov_b32 v{VT}, v{m}")
        a(f"v_permlane32_swap_b32 v{m}, v{VT}")
        a(f"v_max_f32 v{m}, v{m}, v{VT}")
        for i in range(16): a(f"v_mul_f32 v{C[h]+i}, -1.0, v{m}")
    vm.wait(a, ("st", 0))
    a("s_waitcnt lgkmcnt(0)")
    a("s_barrier")
    stamp(a, 3)
    if OPT['yp']:
        a("s_cmp_eq_u32 s52, 0")
        a("s_cbranch_scc1 A_OLD")
        a("s_setprio 1")
        a("A_OLD:")
    def rdK(t):
        a(f"ds_read_b128 {vr(KF_[t%2],4)}, v{KA[t//16]} offset:{((t//4)%4)*16384 + (t%4)*1024}")
    def rdV(t):
        o = ((t//4)%4)*16384 + (t%4)*1024
        a("s_mov_b64 exec, s[68:69]")
        a(f"ds_read_b128 {vr(VF_[t%2],4)}, v{VA[t//16]} offset:{o}")
        a(f"ds_read_b128 {vr(VF_[t%2]+4,4)}, v{VA[t//16]} offset:{o+512}")
        a("s_mov_b64 exec, -1")
    def mS(u):
        t, h = u // 2, u % 2
        a(f"v_mfma_f32_32x32x16_bf16 {vr(S[h],16)}, {vr(KF_[t%2],4)}, {vr(Q[h],4)}, {vr(C[h],16)}")
    def mPV(u, j, first=False):
        t, h = u // 2, u % 2
        a(f"v_mfma_f32_32x32x16_bf16 {vr(O[h],16)}, {vr(VF_[t%2]+4*j,4)}, {vr(P[h]+4*j,4)}, {'0' if first else vr(O[h],16)}")
    def ex(u, i): a(f"v_exp_f32 v{S[u%2]+i}, v{S[u%2]+i}")
    def cv(u, i): a(f"v_cvt_pk_bf16_f32 v{P[u%2]+i}, v{S[u%2]+2*i}, v{S[u%2]+2*i+1}")
    rdK(0); rdV(0)
    a("s_waitcnt lgkmcnt(2)")
    mS(0)
    SY = {0: (1, 4), 1: (3, 8), 3: (7, 12)}
    slow = []
    for u in range(64):
        t, h = u // 2, u % 2
        s, uu = u // 8, u % 8
        ex(u, 0); ex(u, 1)
        if u > 0: mPV(u - 1, 1)
        ex(u, 2); ex(u, 3); ex(u, 4)
        if h == 1: a("s_waitcnt lgkmcnt(0)")
        if u < 63: mS(u + 1)
        if h == 0 and t < 31:
            rdK(t + 1); rdV(t + 1)
        if s in SY:
            if uu == 1:
                vm.wait(a, ("st", SY[s][0]))
                lds_arrive(a, O_AC, 0, VONE)
            if uu == 4:
                a(f"ds_read_b32 v{AT0}, v0 offset:{O_AC}")
            if uu == 5:
                a(f"v_readfirstlane_b32 s70, v{AT0}")
                a(f"s_cmp_ge_u32 s70, {SY[s][1]}")
                a(f"s_cbranch_scc0 A_SLOW{s}")
                a(f"A_OK{s}:")
                slow.append(s)
        if s == 6 and uu == 1:
            lds_arrive(a, O_AC, 0, VONE)
        if OPT['yp'] and u == OPT['yp']: a("s_setprio 0")
        if u in (16, 32, 48): stamp(a, 3 + u // 16)
        ex(u, 5); ex(u, 6); ex(u, 7); ex(u, 8)
        for i in range(4): cv(u, i)
        ex(u, 9); ex(u, 10); ex(u, 11)
        if u == 0: a("s_waitcnt lgkmcnt(3)")
        mPV(u, 0, first=(u < 2))
        for i in range(12, 16): ex(u, i)
        for i in range(4, 8): cv(u, i)
    a(f"ds_read_b32 v{AT0}, v0 offset:{O_AC}")
    mPV(63, 1)
    a("s_setprio 1")
    stamp(a, 7)
    a("s_lshr_b32 s66, s53, 1")
    a("s_lshl_b32 s66, s66, 14")
    a("s_and_b32 s67, s53, 1")
    a("s_lshl_b32 s67, s67, 12")
    a("s_add_u32 s66, s66, s67")
    a("s_lshl_b32 s67, s52, 13")
    a("s_add_u32 s66, s66, s67")
    a("s_add_u32 s66, s66, 49152")
    a(f"v_add_u32 v{KW}, s66, v{VL16}")
    a("s_lshl_b32 s66, s44, 2")
    a(f"v_add_u32 v{KA[0]}, s66, v{VS}")
    a("s_waitcnt lgkmcnt(0)")
    a(f"v_readfirstlane_b32 s70, v{AT0}")
    a("s_cmp_ge_u32 s70, 16")
    a("s_cbranch_scc0 A_SLOW9")
    a("A_OK9:")
    a("s_mov_b32 s70, 0x4f800000")
    a(f"v_cmp_gt_f32 vcc, s70, v{O[0]+8}")
    a(f"v_cmp_gt_f32 s[66:67], s70, v{O[1]+8}")
    a("s_and_b64 vcc, vcc, s[66:67]")
    a("s_cmp_eq_u64 vcc, -1")
    a("s_cbranch_scc0 A_FALL")
    a("A_FIN:")
    a(f"v_mov_b32 v{O[1]+9}, v{C[1]}")
    a(f"ds_write_b128 v{KW}, {vr(O[1],4)}")
    a(f"ds_write_b128 v{KW}, {vr(O[1]+4,4)} offset:1024")
    a(f"ds_write_b64 v{KW}, {vr(O[1]+8,2)} offset:2048")
    a("s_mov_b64 exec, 1")
    a(f"ds_write_b32 v{KA[0]}, v{VONE} offset:{O_MF}")
    a("s_mov_b64 exec, -1")
    a(f"v_xor_b32 v{KA[0]}, 16, v{KA[0]}")
    a(f"v_xor_b32 v{KW}, 0x2000, v{KW}")
    lds_wait(a, O_MF, "1", KA[0], VT, sleep=0)
    R = S[0]
    a(f"ds_read_b64 {vr(R+8,2)}, v{KW} offset:2048")
    a(f"ds_read_b128 {vr(R,4)}, v{KW}")
    a(f"ds_read_b128 {vr(R+4,4)}, v{KW} offset:1024")
    a("s_waitcnt lgkmcnt(2)")
    a(f"v_min_f32 v{AT0}, v{C[0]}, v{R+9}")
    a(f"v_sub_f32 v{AT1}, v{AT0}, v{R+9}")
    a(f"v_sub_f32 v{AT0}, v{AT0}, v{C[0]}")
    a(f"v_exp_f32 v{AT0}, v{AT0}")
    a(f"v_exp_f32 v{AT1}, v{AT1}")
    a(f"v_mul_f32 v{VT}, v{AT0}, v{O[0]+8}")
    a(f"v_fma_f32 v{VT}, v{AT1}, v{R+8}, v{VT}")
    a(f"v_rcp_f32 v{VT}, v{VT}")
    a(f"v_mul_f32 v{AT0}, v{AT0}, v{VT}")
    a(f"v_mul_f32 v{AT1}, v{AT1}, v{VT}")
    for i in range(8): a(f"v_mul_f32 v{O[0]+i}, v{AT0}, v{O[0]+i}")
    a("s_waitcnt lgkmcnt(0)")
    for i in range(8): a(f"v_fma_f32 v{O[0]+i}, v{AT1}, v{R+i}, v{O[0]+i}")
    for i in range(4): a(f"v_cvt_pk_bf16_f32 v{P[0]+i}, v{O[0]+2*i}, v{O[0]+2*i+1}")
    a(f"buffer_store_dwordx4 {vr(P[0],4)}, v{VL16}, s[28:31], s64 offen{SC()}")
    if STAMP:
        stamp(a, 8)
        a("s_waitcnt vmcnt(0)")
        stamp(a, 9)
        stamp_out(a, 1)
    a("s_endpgm")
    for s in slow + [9]:
        a(f"A_SLOW{s}:")
        lds_wait(a, O_AC, str(SY[s][1] if s in SY else 16), 0, AT0, sleep=1)
        a(f"s_branch A_OK{s}")
    a("A_FALL:")
    a("s_mov_b32 s62, s56")
    a("s_mov_b32 s54, 0")
    a(f"v_mov_b32 v{AT0}, 0xff800000")
    a(f"v_mov_b32 v{AT1}, 0xff800000")
    a("A_MAXL:")
    a(f"buffer_load_dwordx4 {vr(KF_[0],4)}, v{VL16}, s[28:31], s62 offen")
    a("s_waitcnt vmcnt(0)")
    for h in range(2):
        a(f"v_mfma_f32_32x32x16_bf16 {vr(S[h],16)}, {vr(KF_[0],4)}, {vr(Q[h],4)}, 0")
    a("s_add_u32 s62, s62, 1024")
    for h in range(2):
        for i in range(8):
            a(f"v_max3_f32 v{AT0+h}, v{S[h]+2*i}, v{S[h]+2*i+1}, v{AT0+h}")
    a("s_add_u32 s54, s54, 1")
    a("s_cmp_lt_u32 s54, 32")
    a("s_cbranch_scc1 A_MAXL")
    for h in range(2):
        m = AT0 + h
        a(f"v_mov_b32 v{VT}, v{m}")
        a(f"v_permlane32_swap_b32 v{m}, v{VT}")
        a(f"v_max_f32 v{m}, v{m}, v{VT}")
        for i in range(16): a(f"v_mul_f32 v{C[h]+i}, -1.0, v{m}")
    for i in range(32): a(f"v_mov_b32 v{O[0]+i}, 0")
    a("s_mov_b32 s62, s56")
    a("s_add_u32 s63, s56, 0x200000")
    a("s_mov_b32 s54, 0")
    a("A_FBL:")
    a(f"buffer_load_dwordx4 {vr(KF_[0],4)}, v{VL16}, s[28:31], s62 offen")
    a("s_mov_b64 exec, s[68:69]")
    a(f"buffer_load_dwordx4 {vr(VF_[0],4)}, v{VVB}, s[28:31], s63 offen")
    a(f"buffer_load_dwordx4 {vr(VF_[0]+4,4)}, v{VVB}, s[28:31], s63 offen offset:512")
    a("s_mov_b64 exec, -1")
    a("s_waitcnt vmcnt(0)")
    mS(0); mS(1)
    a("s_add_u32 s62, s62, 1024")
    a("s_add_u32 s63, s63, 1024")
    for u in range(2):
        for i in range(16): ex(u, i)
        for i in range(8): cv(u, i)
        mPV(u, 0); mPV(u, 1)
    a("s_nop 7"); a("s_nop 7")
    a("s_add_u32 s54, s54, 1")
    a("s_cmp_lt_u32 s54, 32")
    a("s_cbranch_scc1 A_FBL")
    a("s_branch A_FIN")

def gen_down(a):
    D0 = 8; GV = 9; TR0 = 10; TR1 = 11
    WF = [32, 40]; BR = 48; ACC = 104
    a("s_and_b32 s56, s44, 3")
    a(f"v_lshrrev_b32 v20, 3, v{VL}")
    a(f"v_bfe_u32 v21, v{VL}, 4, 1")
    a("v_lshlrev_b32 v21, 2, v21")
    a(f"v_and_b32 v22, 7, v{VL}")
    a("v_xor_b32 v21, v21, v22")
    a("v_lshlrev_b32 v20, 10, v20")
    a(f"v_lshl_add_u32 v{D0}, v21, 4, v20")
    a("s_lshl_b32 s59, s48, 7")
    a("s_mul_i32 s62, s56, 458752")
    a("s_add_u32 s62, s62, s59")
    a("s_lshl_b32 s67, s56, 10")
    a(f"s_add_u32 s67, s67, {GRING}")
    a("s_mul_i32 s64, s47, 229376")
    a("s_mul_i32 s65, s56, 28672")
    a("s_add_u32 s64, s64, s65")
    a(f"s_add_u32 s64, s64, {hex(WS_HF)}")
    a("s_add_u32 s65, s64, 114688")
    stamp_init(a)
    a("s_waitcnt lgkmcnt(0)")
    stamp(a, 0)
    srd(a, 24, 16, 0x1c0000)
    srd(a, 28, 10, WS_SIZE)
    vm = VM(); lg = LG()
    def wdma(u):
        a(f"s_add_u32 m0, s67, {(u % 7)*4096}")
        a(f"buffer_load_dwordx4 v{D0}, s[24:27], s62 offen lds"); vm.issue(("u", u))
        a("s_add_u32 s62, s62, 8192")
    def bload(s):
        sl = s % 7
        a(f"buffer_load_dwordx4 {vr(BR+8*sl,4)}, v{VL16}, s[28:31], s64 offen offset:{(s%4)*1024}"); vm.issue()
        a(f"buffer_load_dwordx4 {vr(BR+8*sl+4,4)}, v{VL16}, s[28:31], s65 offen offset:{(s%4)*1024}"); vm.issue(("b", s))
        if s % 4 == 3:
            a("s_add_u32 s64, s64, 4096")
            a("s_add_u32 s65, s65, 4096")
    def rd(s):
        w = WF[s % 2]
        u0 = (2*s) % 7; u1 = (2*s + 1) % 7
        for ct, tr in ((0, TR0), (1, TR1)):
            a(f"ds_read_b64_tr_b16 {vr(w+4*ct,2)}, v{tr} offset:{u0*4096}"); lg.issue()
            a(f"ds_read_b64_tr_b16 {vr(w+4*ct+2,2)}, v{tr} offset:{u1*4096}"); lg.issue(("w", s))
    wdma(0); wdma(1); bload(0); wdma(2); wdma(3); bload(1); wdma(4); wdma(5); bload(2); wdma(6)
    for s in range(3, 6): bload(s)
    stamp(a, 1)
    a(f"v_mov_b32 v{VS}, {SYNC}")
    a(f"v_mov_b32 v{VONE}, 1")
    a(f"v_lshrrev_b32 v{VHI}, 5, v{VL}")
    a(f"v_bfe_u32 v20, v{VL}, 2, 2")
    a(f"v_lshl_add_u32 v20, v{VHI}, 2, v20")
    a("v_lshlrev_b32 v20, 7, v20")
    a(f"v_bfe_u32 v21, v{VL}, 3, 1")
    a("v_lshl_add_u32 v20, v21, 6, v20")
    a(f"v_bfe_u32 v21, v{VL}, 4, 1")
    a("v_lshl_add_u32 v20, v21, 5, v20")
    a(f"v_and_b32 v21, 3, v{VL}")
    a("v_lshl_add_u32 v12, v21, 3, v20")
    a(f"v_add_u32 v{TR0}, s67, v12")
    a(f"v_xor_b32 v{TR1}, 64, v{TR0}")
    a("s_and_b32 s57, s56, 1")
    a("s_lshl_b32 s58, s47, 1")
    a("s_add_u32 s57, s57, s58")
    a("s_lshl_b32 s57, s57, 7")
    a(f"s_add_u32 s57, s57, {hex(WS_G)}")
    a(f"v_and_b32 v20, 31, v{VL}")
    a("v_lshlrev_b32 v13, 2, v20")
    a("s_lshl_b32 s58, s47, 3")
    a("s_add_u32 s58, s58, s48")
    a("s_lshl_b32 s58, s58, 13")
    a("s_lshl_b32 s60, s56, 11")
    a("s_add_u32 s58, s58, s60")
    a(f"s_add_u32 s58, s58, {hex(WS_BP)}")
    a("s_barrier")
    if OPT['gprio']: a(f"s_setprio {OPT['gprio']}")
    stamp(a, 2)
    vm.wait(a, ("u", 1))
    rd(0)
    for s in range(28):
        if s + 1 < 28:
            vm.wait(a, ("u", 2*s + 3))
            rd(s + 1)
        lg.wait(a, ("w", s))
        for u in (2*s + 7, 2*s + 8):
            if u < 56: wdma(u)
        vm.wait(a, ("b", s))
        w = WF[s % 2]; sl = s % 7
        for ct in range(2):
            for tt in range(2):
                acc = vr(ACC + 16 * (2*ct + tt), 16)
                a(f"v_mfma_f32_32x32x16_bf16 {acc}, {vr(w+4*ct,4)}, {vr(BR+8*sl+4*tt,4)}, {'0' if s == 0 else acc}")
        if s + 6 < 28: bload(s + 6)
        if s == 22:
            a(f"buffer_load_dword v{GV}, v13, s[28:31], s57 offen"); vm.issue("g")
        if s == 13: stamp(a, 3)
    stamp(a, 4)
    L = uid("GW"); D = uid("GD")
    a(f"{L}:")
    a(f"ds_read_b64 v[20:21], v{VS} offset:{O_AC}")
    a("s_waitcnt lgkmcnt(0)")
    a("v_min_u32 v20, v20, v21")
    a("v_readfirstlane_b32 s70, v20")
    a("s_cmp_ge_u32 s70, 12")
    a(f"s_cbranch_scc1 {D}")
    budget(a, 1, D)
    a("s_sleep 8")
    a(f"s_branch {L}")
    a(f"{D}:")
    stamp(a, 5)
    XB = 0
    for q in range(4):
        sk = uid("XS")
        a(f"s_cmp_eq_u32 s56, {q}")
        a(f"s_cbranch_scc1 {sk}")
        a(f"s_sub_u32 s66, s56, {q+1}")
        a("s_and_b32 s66, s66, 3")
        a("s_lshl_b32 s66, s66, 12")
        a(f"s_add_u32 s66, s66, {XB + q*12288}")
        a(f"v_add_u32 v13, s66, v{VL16}")
        for i in range(4):
            a(f"ds_write_b128 v13, {vr(ACC+16*q+4*i,4)} offset:{i*1024}")
        a(f"s_branch {sk}_e")
        a(f"{sk}:")
        for i in range(16): a(f"v_mov_b32 v{16+i}, v{ACC+16*q+i}")
        a(f"{sk}_e:")
    lds_arrive(a, O_GC, VS, VONE)
    lds_wait(a, O_GC, "4", VS, VT, sleep=1)
    BP = 16
    a("s_mul_i32 s66, s56, 12288")
    a(f"v_add_u32 v13, s66, v{VL16}")
    for t in range(3):
        for i in range(4):
            a(f"ds_read_b128 {vr(ACC+16*t+4*i,4)}, v13 offset:{XB + t*4096 + i*1024}")
    a("s_waitcnt vmcnt(0)")
    a(f"v_sub_f32 v10, 1.0, v{GV}")
    a("v_cvt_pk_bf16_f32 v10, v10, v10")
    a("v_and_b32 v10, 0xffff0000, v10")
    a("s_waitcnt lgkmcnt(0)")
    for i in range(16):
        a(f"v_add_f32 v{ACC+i}, v{ACC+i}, v{ACC+16+i}")
        a(f"v_add_f32 v{BP+i}, v{BP+i}, v{ACC+32+i}")
    for i in range(16):
        a(f"v_add_f32 v{BP+i}, v{BP+i}, v{ACC+i}")
    for i in range(16):
        a(f"v_mul_f32 v{BP+i}, v10, v{BP+i}")
    for i in range(8):
        a(f"v_cvt_pk_bf16_f32 v{BP+i}, v{BP+2*i}, v{BP+2*i+1}")
    a(f"buffer_store_dwordx4 {vr(BP,4)}, v{VL16}, s[28:31], s58 offen{SC()}")
    a(f"buffer_store_dwordx4 {vr(BP+4,4)}, v{VL16}, s[28:31], s58 offen offset:1024{SC()}")
    if STAMP:
        stamp(a, 8)
        a("s_waitcnt vmcnt(0)")
        stamp(a, 9)
        stamp_out(a, 1)

def gen_k3(a):
    N = "k3_kernel"
    header(a, N)
    a("s_cmp_ge_u32 s2, 256")
    a("s_cbranch_scc1 K3_END")
    a("s_load_dwordx2 s[10:11], s[0:1], 80")
    a("s_load_dwordx2 s[8:9], s[0:1], 16")
    a("s_load_dwordx2 s[20:21], s[0:1], 64")
    a("v_lshrrev_b32 v8, 6, v0")
    a(f"v_and_b32 v{VL}, 63, v0")
    a("v_readfirstlane_b32 s44, v8")
    a("s_and_b32 s50, s2, 7")
    a("s_lshr_b32 s51, s2, 3")
    a("s_lshl_b32 s47, s50, 2")
    a("s_and_b32 s52, s51, 3")
    a("s_add_u32 s47, s47, s52")
    a("s_lshr_b32 s48, s51, 2")
    a(f"v_lshlrev_b32 v{VL16}, 4, v{VL}")
    D0 = 8
    a(f"v_lshrrev_b32 v20, 3, v{VL}")
    a(f"v_bfe_u32 v21, v{VL}, 4, 1")
    a("v_lshlrev_b32 v21, 2, v21")
    a(f"v_and_b32 v22, 7, v{VL}")
    a("v_xor_b32 v21, v21, v22")
    a("v_lshlrev_b32 v20, 10, v20")
    a(f"v_lshl_add_u32 v{D0}, v21, 4, v20")
    a("s_lshl_b32 s52, s44, 13")
    a("s_lshl_b32 s53, s47, 16")
    a("s_add_u32 s53, s53, s52")
    a(f"s_add_u32 s53, s53, {hex(WS_OF)}")
    a("s_lshr_b32 s54, s44, 1")
    a("s_lshl_b32 s54, s54, 4")
    a("s_and_b32 s55, s44, 1")
    a("s_add_u32 s54, s54, s55")
    a("s_lshl_b32 s55, s54, 10")
    a("s_add_u32 s55, s55, 65536")
    a("s_lshl_b32 s54, s54, 13")
    a("s_lshl_b32 s59, s48, 7")
    a("s_add_u32 s54, s54, s59")
    a("s_mov_b32 m0, s52")
    stamp_init(a)
    a("s_waitcnt lgkmcnt(0)")
    stamp(a, 0)
    srd(a, 28, 10, WS_SIZE)
    srd(a, 32, 8, 0x80000)
    vm = VM()
    for s in range(8):
        if s > 0: a(f"s_add_u32 m0, s52, {(s//4)*4096}")
        a(f"buffer_load_dwordx4 v{VL16}, s[28:31], s53 offen offset:{(s%4)*1024} lds"); vm.issue()
        a(f"s_add_u32 m0, s55, {s*2048}")
        a(f"buffer_load_dwordx4 v{D0}, s[32:35], s54 offen lds"); vm.issue(("st", s))
        if s < 7: a("s_add_u32 s54, s54, 16384")
        if s == 3: a("s_add_u32 s53, s53, 4096")
    stamp(a, 1)
    a("s_cmp_ge_u32 s44, 4")
    a("s_cbranch_scc1 K3_COMP")
    import copy
    vm2 = copy.deepcopy(vm)
    for s in range(8):
        vm2.wait(a, ("st", s))
        a("s_barrier")
    if STAMP:
        stamp(a, 2)
        stamp_out(a, 2)
    a("s_endpgm")
    a("K3_COMP:")
    BPR = 24; GV = 9; OA = 10; TR = 11; OUTA = 14; BF = 32; ACC = 48; FR = [64, 96]
    a("s_and_b32 s56, s44, 3")
    a("s_and_b32 s57, s56, 1")
    a("s_lshr_b32 s58, s56, 1")
    a("s_lshl_b32 s60, s47, 3")
    a("s_add_u32 s60, s60, s48")
    a("s_lshl_b32 s60, s60, 13")
    a("s_lshl_b32 s61, s56, 11")
    a("s_add_u32 s60, s60, s61")
    a(f"s_add_u32 s60, s60, {hex(WS_BP)}")
    a(f"buffer_load_dwordx4 {vr(BPR,4)}, v{VL16}, s[28:31], s60 offen"); vm.issue()
    a(f"buffer_load_dwordx4 {vr(BPR+4,4)}, v{VL16}, s[28:31], s60 offen offset:1024"); vm.issue()
    a("s_lshl_b32 s61, s47, 1")
    a("s_add_u32 s61, s61, s57")
    a("s_lshl_b32 s62, s61, 7")
    a(f"s_add_u32 s62, s62, {hex(WS_G)}")
    a(f"v_and_b32 v20, 31, v{VL}")
    a("v_lshlrev_b32 v13, 2, v20")
    a(f"buffer_load_dword v{GV}, v13, s[28:31], s62 offen"); vm.issue("g")
    srd(a, 36, 20, 0x200000)
    a(f"v_lshrrev_b32 v{VHI}, 5, v{VL}")
    a(f"v_lshlrev_b32 v{OUTA}, 10, v20")
    a(f"v_lshl_add_u32 v{OUTA}, v{VHI}, 4, v{OUTA}")
    a("s_lshl_b32 s63, s61, 15")
    a("s_add_u32 s63, s63, s59")
    a("s_lshl_b32 s64, s58, 6")
    a("s_add_u32 s63, s63, s64")
    a("s_lshl_b32 s65, s57, 15")
    a(f"v_add_u32 v{OA}, s65, v{VL16}")
    a(f"v_bfe_u32 v12, v{VL}, 2, 2")
    a(f"v_lshl_add_u32 v12, v{VHI}, 2, v12")
    a("v_lshlrev_b32 v12, 7, v12")
    a(f"v_bfe_u32 v15, v{VL}, 3, 1")
    a("v_lshl_add_u32 v12, v15, 6, v12")
    a(f"v_bfe_u32 v15, v{VL}, 4, 1")
    a("v_lshl_add_u32 v12, v15, 5, v12")
    a(f"v_and_b32 v15, 3, v{VL}")
    a("v_lshl_add_u32 v12, v15, 3, v12")
    a("v_xor_b32 v12, s64, v12")
    a(f"v_add_u32 v{TR}, 0x10000, v12")
    lg = LG()
    def rd(s):
        f = FR[s % 2]
        for j in range(4):
            hd = 8*j + s
            a(f"ds_read_b128 {vr(f+8*j,4)}, v{OA} offset:{hd*1024}"); lg.issue()
            a(f"ds_read_b64_tr_b16 {vr(f+8*j+4,2)}, v{TR} offset:{hd*2048}"); lg.issue()
            a(f"ds_read_b64_tr_b16 {vr(f+8*j+6,2)}, v{TR} offset:{hd*2048+1024}"); lg.issue(("f", s, j))
    def mm(s):
        f = FR[s % 2]
        for j in range(4):
            lg.wait(a, ("f", s, j))
            a(f"v_mfma_f32_32x32x16_bf16 {vr(ACC,16)}, {vr(f+8*j+4,4)}, {vr(f+8*j,4)}, {'0' if (s == 0 and j == 0) else vr(ACC,16)}")
    for s in range(8):
        vm.wait(a, ("st", s))
        a("s_barrier")
        if s == 0: stamp(a, 2)
        if s == 7: stamp(a, 3)
        rd(s)
        if s > 0: mm(s - 1)
    vm.wait(a, "g")
    for i in range(8):
        a(f"v_lshlrev_b32 v{BF+2*i}, 16, v{BPR+i}")
        a(f"v_and_b32 v{BF+2*i+1}, 0xffff0000, v{BPR+i}")
    mm(7)
    for i in range(16):
        a(f"v_fma_f32 v{BF+i}, v{GV}, v{ACC+i}, v{BF+i}")
    for i in range(8):
        a(f"v_cvt_pk_bf16_f32 v{BPR+i}, v{BF+2*i}, v{BF+2*i+1}")
    for b in (0, 4):
        a(f"v_permlane32_swap_b32 v{BPR+b}, v{BPR+b+2}")
        a(f"v_permlane32_swap_b32 v{BPR+b+1}, v{BPR+b+3}")
    a(f"buffer_store_dwordx4 {vr(BPR,4)}, v{OUTA}, s[36:39], s63 offen")
    a(f"buffer_store_dwordx4 {vr(BPR+4,4)}, v{OUTA}, s[36:39], s63 offen offset:32")
    if STAMP:
        stamp(a, 4)
        a("s_waitcnt vmcnt(0)")
        stamp(a, 5)
        stamp_out(a, 2)
    a("K3_END:")
    a("s_endpgm")
    return N, 128, (256, 512, 131072)

def build(path):
    a = Asm()
    ks = [gen_k1(a), gen_k2(a), gen_k3(a)]
    out = []
    for (n, v, (g, b, l)) in ks:
        out.append(f"; @launch kernel={n} grid=({g},1,1) block=({b},1,1) lds={l}")
    out.append('.amdgcn_target "amdgcn-amd-amdhsa--gfx950"')
    out.append(".text")
    out.append(a.text())
    out.append('.section .rodata,"a"')
    for (n, v, _) in ks:
        out.append(kd(n, v))
    open(path, "w").write("\n".join(out))

if __name__ == "__main__":
    path = sys.argv[1]
    args = sys.argv[2:]
    STAMP = "stamp" in args
    for x in args:
        if "=" in x:
            k, v = x.split("="); OPT[k] = int(v)
    build(path)
```

```python
import sys
from asmlib import *

WS_QF = 0x000000; WS_KF = 0x200000; WS_VF = 0x400000; WS_OF = 0x600000
WS_BP = 0x800000; WS_HF = 0xA00000; WS_G = 0x1100000; WS_ST = 0x1200000
WS_SIZE = 0x2000000
QSCALE = 0x3eb8aa3b
SPIN = 1 << 20

STAMP = False
OPT = dict(sc1=0, touch=1, tmod=0, tsl=0, il=1, yp=52, gprio=2, k3ns=8)

def srd(a, sbase, sptr, size):
    a(f"s_mov_b32 s{sbase}, s{sptr}")
    a(f"s_mov_b32 s{sbase+1}, s{sptr+1}")
    a(f"s_mov_b32 s{sbase+2}, {hex(size)}")
    a(f"s_mov_b32 s{sbase+3}, 0x00020000")

def header(a, name):
    a(f".globl {name}"); a(".p2align 8"); a(f".type {name},@function"); a(f"{name}:")

def kd(name, vgpr, sgpr=102):
    acc = (vgpr + 3) // 4 * 4
    return f""".p2align 6
.amdhsa_kernel {name}
  .amdhsa_next_free_vgpr {vgpr}
  .amdhsa_next_free_sgpr {sgpr}
  .amdhsa_accum_offset {acc}
  .amdhsa_group_segment_fixed_size 0
  .amdhsa_kernarg_size 88
  .amdhsa_user_sgpr_count 2
  .amdhsa_user_sgpr_kernarg_segment_ptr 1
  .amdhsa_system_sgpr_workgroup_id_x 1
.end_amdhsa_kernel
"""

NST = 12
def stamp(a, i):
    if not STAMP: return
    a("s_memrealtime s[76:77]")
    a("s_waitcnt lgkmcnt(0)")
    a(f"s_mov_b32 s{78+i}, s76")
def stamp_init(a):
    if not STAMP: return
    for i in range(NST): a(f"s_mov_b32 s{78+i}, 0")
def stamp_out(a, k):
    if not STAMP: return
    a("s_mov_b64 exec, 1")
    a("s_lshl_b32 s72, s2, 10")
    a("s_lshl_b32 s73, s44, 6")
    a("s_add_u32 s72, s72, s73")
    a(f"s_add_u32 s72, s72, {hex(WS_ST + k*0x40000)}")
    a("v_mov_b32 v0, 0")
    for i in range(NST):
        a(f"v_mov_b32 v2, s{78+i}")
        a(f"buffer_store_dword v2, v0, s[28:31], s72 offen offset:{4*i}")
        a("s_nop 1")

_uid = [0]
def uid(p):
    _uid[0] += 1
    return f"{p}_{_uid[0]}"

class Cnt:
    def __init__(self, name, mx): self.n = 0; self.tags = {}; self.done = 0; self.name = name; self.mx = mx
    def issue(self, tag=None):
        self.n += 1
        if tag is not None: self.tags[tag] = self.n
    def cnt(self, tag): return self.n - self.tags[tag]
    def wait(self, a, *tags):
        t = max(self.tags[x] for x in tags)
        if t <= self.done: return
        c = min(self.n - t, self.mx)
        a(f"s_waitcnt {self.name}({c})")
        self.done = self.n - c
    def wait_all(self, a):
        if self.done >= self.n: return
        a(f"s_waitcnt {self.name}(0)"); self.done = self.n
def LG(): return Cnt("lgkmcnt", 15)
def VM(): return Cnt("vmcnt", 63)

def budget(a, n, D):
    a(f"s_sub_u32 s3, s3, {n}")
    a("s_cmp_lt_i32 s3, 0")
    a(f"s_cbranch_scc1 {D}")
def lds_wait(a, off, target, vs, vt, sleep=1, stmp="s70"):
    L = uid("LW"); D = uid("LD")
    a(f"{L}:")
    a(f"ds_read_b32 v{vt}, v{vs} offset:{off}")
    a("s_waitcnt lgkmcnt(0)")
    a(f"v_readfirstlane_b32 {stmp}, v{vt}")
    a(f"s_cmp_ge_u32 {stmp}, {target}")
    a(f"s_cbranch_scc1 {D}")
    budget(a, 1, D)
    if sleep: a(f"s_sleep {sleep}")
    a(f"s_branch {L}")
    a(f"{D}:")
def lds_arrive(a, off, vs, vone):
    a("s_mov_b64 exec, 1")
    a(f"ds_add_u32 v{vs}, v{vone} offset:{off}")
    a("s_mov_b64 exec, -1")

def SC(): return " sc1" if OPT['sc1'] else ""

XR = 0; WR = 49152
def gen_k1(a):
    N = "k1_kernel"
    header(a, N)
    a("s_cmp_ge_u32 s2, 256")
    a("s_cbranch_scc1 K1_END")
    a("s_load_dwordx4 s[4:7], s[0:1], 0")
    a("s_load_dwordx4 s[8:11], s[0:1], 32")
    a("s_load_dwordx2 s[14:15], s[0:1], 80")
    a("s_load_dwordx2 s[12:13], s[0:1], 56")
    a("v_lshrrev_b32 v2, 6, v0")
    a("v_and_b32 v1, 63, v0")
    a("v_readfirstlane_b32 s44, v2")
    a("s_and_b32 s50, s2, 7")
    a("s_lshr_b32 s51, s2, 3")
    a("s_and_b32 s45, s50, 1")
    a("s_lshl_b32 s45, s45, 3")
    a("s_and_b32 s52, s51, 7")
    a("s_add_u32 s45, s45, s52")
    a("s_lshr_b32 s46, s50, 1")
    a("s_lshr_b32 s47, s51, 3")
    a("s_mul_i32 s48, s46, 7")
    a("s_lshl_b32 s52, s47, 1")
    a("s_add_u32 s48, s48, s52")
    a("s_mul_i32 s49, s46, 3")
    a("s_add_u32 s52, s49, s47")
    a("s_add_u32 s53, s52, 16")
    a("s_add_u32 s54, s52, 4")
    a("s_cmp_lt_u32 s52, 8")
    a("s_cselect_b32 s53, s53, s54")
    a("s_add_u32 s54, s49, 2")
    a("s_cmp_eq_u32 s47, 3")
    a("s_cselect_b32 s53, s54, s53")
    a("s_cmp_ge_u32 s44, 4")
    a("s_cbranch_scc1 K1_COMP")
    VX = 4; VW = 8; V4 = 12; T0 = 13; T1 = 14; T2 = 15
    a(f"v_lshrrev_b32 v{T0}, 3, v1")
    a(f"v_and_b32 v{T1}, 7, v1")
    a(f"v_lshrrev_b32 v{T2}, 4, v1")
    a(f"v_xor_b32 v{T2}, v{T1}, v{T2}")
    a(f"v_lshlrev_b32 v{VX}, 10, v{T0}")
    a(f"v_lshl_add_u32 v{VX}, v{T2}, 4, v{VX}")
    a(f"v_xor_b32 v{VX+1}, 64, v{VX}")
    a(f"v_add_u32 v{VX+1}, 0x2000, v{VX+1}")
    a(f"v_add_u32 v{VX+2}, 0x4000, v{VX}")
    a(f"v_add_u32 v{VX+3}, 0x4000, v{VX+1}")
    a("s_lshl_b32 s55, s45, 17")
    a("s_lshl_b32 s56, s44, 15")
    a("s_add_u32 s55, s55, s56")
    a("s_lshl_b32 s56, s44, 12")
    a("s_and_b32 s52, s44, 1")
    a("s_add_u32 s58, s48, s52")
    a("s_cmp_eq_u32 s47, 3")
    a("s_cselect_b32 s58, s48, s58")
    a("s_cselect_b32 s59, 1, 0")
    a("s_andn2_b32 s59, s59, s52")
    a("s_lshr_b32 s52, s44, 1")
    a("s_add_u32 s52, s52, s49")
    a("s_movk_i32 s57, 3584")
    a("s_cmp_eq_u32 s59, 1")
    a("s_cselect_b32 s58, s52, s58")
    a("s_cselect_b32 s57, 3072, s57")
    a("s_lshl_b32 s58, s58, 7")
    a(f"v_bfe_u32 v{T2}, v1, 4, 1")
    a(f"v_lshlrev_b32 v{T2}, 2, v{T2}")
    a(f"v_xor_b32 v{T1}, v{T1}, v{T2}")
    a(f"v_lshlrev_b32 v{T1}, 4, v{T1}")
    a(f"v_mad_u32_u24 v{VW}, v{T0}, s57, v{T1}")
    a("s_lshl_b32 s52, s57, 3")
    for p in range(1, 4): a(f"v_add_u32 v{VW+p}, s52, v{VW+p-1}")
    a("s_lshl_b32 s57, s57, 5")
    a(f"v_mul_u32_u24 v{V4}, 0xc00, v{T0}")
    a(f"v_add_u32 v{V4}, v{V4}, v{T1}")
    a("s_lshl_b32 s60, s53, 7")
    a("s_mul_i32 s52, s44, 24576")
    a("s_add_u32 s60, s60, s52")
    a("s_lshl_b32 s61, s44, 10")
    stamp_init(a)
    a("s_waitcnt lgkmcnt(0)")
    stamp(a, 0)
    srd(a, 24, 4, 0x200000)
    vm = VM()
    def xdma(c):
        for p in range(4):
            a(f"s_add_u32 m0, s56, {XR + (c % 3)*16384 + p*1024}")
            a(f"buffer_load_dwordx4 v{VX+p}, s[24:27], s55 offen lds"); vm.issue(("x", c))
        a("s_add_u32 s55, s55, 128")
    def wdma(d):
        for p in range(4):
            a(f"s_add_u32 m0, s56, {WR + (d % 5)*20480 + p*1024}")
            a(f"buffer_load_dwordx4 v{VW+p}, s[32:35], s58 offen lds"); vm.issue()
        a(f"s_add_u32 m0, s61, {WR + (d % 5)*20480 + 16384}")
        a(f"buffer_load_dwordx4 v{V4}, s[36:39], s60 offen lds"); vm.issue(("w", d))
        a("s_add_u32 s58, s58, s57")
        a("s_add_u32 s60, s60, 98304")
    xdma(0)
    srd(a, 32, 8, 0x1c0000)
    a("s_cmp_lt_u32 s44, 2")
    a("s_cbranch_scc1 K1_LG")
    a("s_mov_b32 s32, s10")
    a("s_mov_b32 s33, s11")
    a("K1_LG:")
    a("s_cmp_eq_u32 s59, 0")
    a("s_cbranch_scc1 K1_LQ")
    a("s_mov_b32 s32, s6")
    a("s_mov_b32 s33, s7")
    a("s_mov_b32 s34, 0x180000")
    a("K1_LQ:")
    srd(a, 36, 6, 0x180000)
    wdma(0); wdma(1); xdma(1); wdma(2)
    if not OPT['il']: wdma(3); xdma(2); wdma(4)
    stamp(a, 1)
    srd(a, 28, 14, WS_SIZE)
    srd(a, 40, 12, 1024)
    GA = 16; GX = 20; GW = 28
    a(f"v_and_b32 v{GA}, 31, v1")
    a(f"v_lshlrev_b32 v{GA}, 5, v{GA}")
    a(f"v_lshrrev_b32 v{GA+2}, 5, v1")
    a(f"v_lshl_add_u32 v{GA+1}, v{GA+2}, 10, v{GA}")
    a(f"v_lshlrev_b32 v{GA+2}, 2, v{GA+2}")
    a("s_lshl_b32 s62, s46, 2")
    a("s_add_u32 s62, s62, s47")
    a("s_lshl_b32 s62, s62, 3")
    a("s_lshl_b32 s63, s45, 7")
    a("s_add_u32 s62, s62, s63")
    a("s_lshl_b32 s63, s44, 1")
    a("s_add_u32 s62, s62, s63")
    a("s_lshl_b32 s63, s62, 10")
    a("s_lshl_b32 s62, s62, 2")
    a(f"s_add_u32 s62, s62, {hex(WS_G)}")
    for d in range(-1, 15):
        tags = [("w", d + 1)]
        if (d + 1) % 2 == 0: tags.append(("x", (d + 1) // 2))
        vm.wait(a, *tags)
        a("s_barrier")
        if d in (-1, 3, 7, 11): stamp(a, 2 + (d + 1) // 4)
        if d == -1 and OPT['il']: wdma(3); xdma(2); wdma(4)
        if d >= 0 and d + 5 <= 15:
            if d % 2 == 1: xdma((d + 5) // 2)
            wdma(d + 5)
        if d == 10:
            a(f"buffer_load_dwordx4 {vr(GX,4)}, v{GA+1}, s[24:27], s63 offen"); vm.issue()
            a(f"buffer_load_dwordx4 {vr(GX+4,4)}, v{GA+1}, s[24:27], s63 offen offset:16"); vm.issue()
            a(f"buffer_load_dwordx4 {vr(GW,4)}, v{GA}, s[40:43], 0 offen"); vm.issue()
            a(f"buffer_load_dwordx4 {vr(GW+4,4)}, v{GA}, s[40:43], 0 offen offset:16"); vm.issue()
    stamp(a, 6)
    a("v_mov_b32 v2, 0")
    a("s_waitcnt vmcnt(0)")
    for i in range(8):
        a(f"v_dot2_f32_bf16 v2, v{GX+i}, v{GW+i}, v2")
    for sh in (1, 2, 4, 8):
        a(f"v_add_f32_dpp v2, v2, v2 row_shr:{sh} row_mask:0xf bank_mask:0xf bound_ctrl:0")
    a("v_add_f32_dpp v2, v2, v2 row_bcast:15 row_mask:0xa bank_mask:0xf")
    a("v_cvt_pk_bf16_f32 v2, v2, v2")
    a("v_and_b32 v2, 0xffff0000, v2")
    a("v_mul_f32 v2, 0xbfb8aa3b, v2")
    a("v_exp_f32 v2, v2")
    a("v_add_f32 v2, 1.0, v2")
    a("v_rcp_f32 v2, v2")
    a("v_cvt_pk_bf16_f32 v2, v2, v2")
    a("v_and_b32 v2, 0xffff0000, v2")
    a("s_mov_b32 s64, 0x80000000")
    a("s_mov_b32 s65, 0x80000000")
    a("s_mov_b64 exec, s[64:65]")
    a(f"buffer_store_dword v2, v{GA+2}, s[28:31], s62 offen{SC()}")
    if STAMP:
        a("s_waitcnt vmcnt(0)")
        stamp(a, 7)
        stamp_out(a, 0)
    a("s_endpgm")
    a("K1_COMP:")
    a("s_setprio 1")
    if OPT['touch']:
        TM = OPT['tmod']; tm = {0: "", 1: " sc1", 2: " nt", 3: " sc0 sc1"}[TM]
        TA = 232; TD = 234
        a(f"v_lshrrev_b32 v{TA}, 3, v1")
        a(f"v_and_b32 v{TA+1}, 7, v1")
        a("s_cmp_eq_u32 s44, 7")
        a("s_cbranch_scc1 K1_TX")
        a("s_cmp_eq_u32 s44, 6")
        a("s_cbranch_scc1 K1_TQ")
        a(f"v_min_u32 v{TA+1}, 6, v{TA+1}")
        a(f"v_mul_u32_u24 v{TA}, {32*3584}, v{TA}")
        a(f"v_lshl_add_u32 v{TA}, v{TA+1}, 7, v{TA}")
        a("s_mul_i32 s52, s51, 3584")
        a("s_mul_i32 s54, s46, 896")
        a("s_add_u32 s52, s52, s54")
        a(f"s_add_u32 s54, s52, {256*3584}")
        a("s_waitcnt lgkmcnt(0)")
        srd(a, 32, 8, 0x1c0000)
        a("s_cmp_eq_u32 s44, 4")
        a("s_cbranch_scc1 K1_TG")
        a("s_mov_b32 s32, s10")
        a("s_mov_b32 s33, s11")
        a("s_branch K1_TG")
        a("K1_TQ:")
        a(f"v_min_u32 v{TA+1}, 5, v{TA+1}")
        a(f"v_add_u32 v{TA+1}, s49, v{TA+1}")
        a(f"v_add_u32 v{TD}, 13, v{TA+1}")
        a(f"v_add_u32 v{TD+1}, 1, v{TA+1}")
        a(f"v_cmp_gt_u32 vcc, 11, v{TA+1}")
        a(f"v_cndmask_b32 v{TD}, v{TD+1}, v{TD}, vcc")
        a("s_add_u32 s52, s49, 3")
        a(f"v_cmp_gt_u32 vcc, s52, v{TA+1}")
        a(f"v_cndmask_b32 v{TA+1}, v{TD}, v{TA+1}, vcc")
        a(f"v_mul_u32_u24 v{TA}, {32*3072}, v{TA}")
        a(f"v_lshl_add_u32 v{TA}, v{TA+1}, 7, v{TA}")
        a("s_mul_i32 s52, s51, 3072")
        a(f"s_add_u32 s54, s52, {256*3072}")
        a("s_waitcnt lgkmcnt(0)")
        srd(a, 32, 6, 0x180000)
        a("s_branch K1_TG")
        a("K1_TX:")
        a(f"v_and_b32 v{TA}, 31, v1")
        a(f"v_lshlrev_b32 v{TA}, 10, v{TA}")
        a(f"v_lshrrev_b32 v{TA+1}, 5, v1")
        a(f"v_lshl_add_u32 v{TA}, v{TA+1}, 7, v{TA}")
        a("s_and_b32 s52, s50, 1")
        a("s_lshl_b32 s52, s52, 20")
        a("s_lshl_b32 s54, s51, 15")
        a("s_add_u32 s52, s52, s54")
        a("s_add_u32 s54, s52, 768")
        a("s_add_u32 s52, s52, 512")
        a("s_waitcnt lgkmcnt(0)")
        srd(a, 32, 4, 0x200000)
        if OPT['tsl']: a(f"s_sleep {OPT['tsl']}")
        a(f"buffer_load_dword v{TD+2}, v{TA}, s[32:35], s52 offen{tm}")
        a("s_sub_u32 s52, s52, 256")
        a("K1_TG:")
        if OPT['tsl']: a(f"s_sleep {OPT['tsl']}")
        a(f"buffer_load_dword v{TD}, v{TA}, s[32:35], s52 offen{tm}")
        a(f"buffer_load_dword v{TD+1}, v{TA}, s[32:35], s54 offen{tm}")
    L16 = 2; L16B = 3; XA = 4; TR = 8; VVS = 14; T0 = 15
    F = [16, 44]; ACC = 72; T1 = 72; T2 = 73; HI = 74
    a("s_and_b32 s55, s44, 1")
    a("s_bfe_u32 s56, s44, 0x10001")
    a(f"v_lshrrev_b32 v{HI}, 5, v1")
    a(f"v_and_b32 v{T0}, 31, v1")
    a(f"v_bfe_u32 v{T1}, v{T0}, 1, 3")
    a(f"v_xor_b32 v{T1}, v{T1}, v{HI}")
    a(f"v_lshlrev_b32 v{T1}, 4, v{T1}")
    a(f"v_lshl_add_u32 v{T1}, v{T0}, 7, v{T1}")
    a("s_lshl_b32 s52, s55, 13")
    a(f"v_add_u32 v{XA}, s52, v{T1}")
    for q in range(1, 4): a(f"v_xor_b32 v{XA+q}, {32*q}, v{XA}")
    a(f"v_bfe_u32 v{T0}, v1, 2, 2")
    a(f"v_lshlrev_b32 v{T0}, 7, v{T0}")
    a(f"v_lshl_add_u32 v{T0}, v{HI}, 10, v{T0}")
    a(f"v_bfe_u32 v{T1}, v1, 3, 1")
    a(f"v_lshl_add_u32 v{T0}, v{T1}, 6, v{T0}")
    a(f"v_bfe_u32 v{T1}, v1, 4, 1")
    a(f"v_lshl_add_u32 v{T0}, v{T1}, 5, v{T0}")
    a(f"v_and_b32 v{T2}, 3, v1")
    a(f"v_lshl_add_u32 v{T0}, v{T2}, 3, v{T0}")
    a("s_lshl_b32 s52, s56, 12")
    a(f"s_add_u32 s52, s52, {WR}")
    a(f"v_add_u32 v{TR}, s52, v{T0}")
    a(f"v_xor_b32 v{TR+1}, 64, v{TR}")
    a("s_lshl_b32 s52, s56, 6")
    a(f"v_xor_b32 v{T0}, s52, v{T0}")
    a(f"v_add_u32 v{TR+2}, {WR + 16384}, v{T0}")
    for i in range(3): a(f"v_add_u32 v{TR+3+i}, {61440}, v{TR+i}")
    a(f"v_lshlrev_b32 v{L16}, 4, v1")
    a(f"v_add_u32 v{L16B}, 0x10000, v{L16}")
    a(f"v_lshlrev_b32 v{T1}, 16, v{T1}")
    a(f"v_lshl_add_u32 v{T1}, v{HI}, 8, v{T1}")
    a(f"v_and_b32 v{T2}, 15, v1")
    a(f"v_lshl_add_u32 v{VVS}, v{T2}, 4, v{T1}")
    a("s_lshl_b32 s57, s45, 2")
    a("s_lshl_b32 s52, s55, 1")
    a("s_add_u32 s57, s57, s52")
    a("s_add_u32 s52, s48, s56")
    a("s_cmp_eq_u32 s47, 3")
    a("s_cselect_b32 s52, s48, s52")
    a("s_lshl_b32 s52, s52, 12")
    a("s_mul_i32 s58, s57, 114688")
    a("s_add_u32 s58, s58, s52")
    a(f"s_add_u32 s58, s58, {hex(WS_HF)}")
    a("s_add_u32 s59, s58, 114688")
    a("s_lshl_b32 s57, s57, 10")
    a("s_lshl_b32 s52, s53, 1")
    a("s_add_u32 s52, s52, s56")
    a("s_lshl_b32 s52, s52, 17")
    a("s_add_u32 s60, s52, s57")
    a("s_mul_i32 s52, s46, 786432")
    a("s_add_u32 s61, s52, s57")
    a("s_add_u32 s62, s61, 0x20000")
    a("s_add_u32 s63, s61, 0x40000")
    a("s_add_u32 s64, s61, 0x60000")
    a(f"s_mov_b32 s52, {hex(QSCALE)}")
    a("s_cmp_lt_u32 s53, 8")
    a("s_cselect_b32 s66, s52, 1.0")
    a("s_cmp_lt_u32 s49, 8")
    a("s_cselect_b32 s68, s52, 1.0")
    a("s_cmp_lt_u32 s49, 7")
    a("s_cselect_b32 s70, s52, 1.0")
    a("s_mov_b32 s67, s66"); a("s_mov_b32 s69, s68"); a("s_mov_b32 s71, s70")
    stamp_init(a)
    a("s_waitcnt lgkmcnt(0)")
    stamp(a, 0)
    srd(a, 28, 14, WS_SIZE)
    a("s_cmp_ge_u32 s53, 16")
    a("s_cbranch_scc1 K1_CV")

    def reads(k):
        f = F[k % 2]; d = k // 2; ds = d % 5
        xo = XR + ((k // 4) % 3) * 16384
        wo = ds * 20480 + (k % 2) * 2048
        tb_ = TR
        if ds >= 3: wo -= 61440; tb_ = TR + 3
        out = []
        def x(t): out.append((f"ds_read_b128 {vr(f+4*t,4)}, v{XA + k%4} offset:{xo + t*4096}", ("x", k, t)))
        def w(i):
            r = tb_ + (i % 2 if i < 4 else 2); o = wo + (8192 if i in (2, 3) else 0)
            out.append((f"ds_read_b64_tr_b16 {vr(f+8+4*i,2)}, v{r} offset:{o}", None))
            out.append((f"ds_read_b64_tr_b16 {vr(f+10+4*i,2)}, v{r} offset:{o+512}", ("w", k, i)))
        x(0); w(0); x(1); w(1); w(2); w(3); w(4)
        return out
    def mfma(k, i, t, var):
        f = F[k % 2]; acc = vr(ACC + 16*(2*i + t), 16)
        X = vr(f + 4*t, 4); W = vr(f + 8 + 4*i, 4)
        A, B = (X, W) if (var == "V" and i == 4) else (W, X)
        return f"v_mfma_f32_32x32x16_bf16 {acc}, {A}, {B}, {'0' if k == 0 else acc}"
    def epi_T(i, t, sscale, soff):
        A = ACC + 16*(2*i + t); out = []
        for j in range(8): out.append(f"v_pk_mul_f32 {vr(A+2*j,2)}, {vr(A+2*j,2)}, {sr(sscale,2)}")
        for j in range(8): out.append(f"v_cvt_pk_bf16_f32 v{A+j}, v{A+2*j}, v{A+2*j+1}")
        out.append(f"buffer_store_dwordx4 {vr(A,4)}, v{L16}, s[28:31], s{soff} offen offset:{t*1024}{SC()}")
        out.append(f"buffer_store_dwordx4 {vr(A+4,4)}, v{L16B}, s[28:31], s{soff} offen offset:{t*1024}{SC()}")
        return out
    def epi_V(i, t, soff):
        A = ACC + 16*(2*i + t); out = []
        for j in range(8): out.append(f"v_cvt_pk_bf16_f32 v{A+j}, v{A+2*j}, v{A+2*j+1}")
        out.append(f"buffer_store_dwordx4 {vr(A,4)}, v{VVS}, s[28:31], s{soff} offen offset:{t*1024}{SC()}")
        out.append(f"buffer_store_dwordx4 {vr(A+4,4)}, v{VVS}, s[28:31], s{soff} offen offset:{t*1024+512}{SC()}")
        return out
    def epi_H(ct, t):
        A = ACC + 16*(2*ct + t); U = ACC + 16*(2*(ct+2) + t); out = []
        for j in range(8): out.append(f"v_pk_mul_f32 {vr(A+2*j,2)}, {vr(A+2*j,2)}, {vr(U+2*j,2)}")
        for j in range(8): out.append(f"v_cvt_pk_bf16_f32 v{A+j}, v{A+2*j}, v{A+2*j+1}")
        out.append(f"buffer_store_dwordx4 {vr(A,4)}, v{L16}, s[28:31], s{58+t} offen offset:{ct*2048}{SC()}")
        out.append(f"buffer_store_dwordx4 {vr(A+4,4)}, v{L16}, s[28:31], s{58+t} offen offset:{ct*2048+1024}{SC()}")
        return out
    def final(lg, var, kind):
        import copy
        lg = copy.deepcopy(lg)
        rd = reads(31)
        rd = [rd[0], rd[3], rd[10], rd[11], rd[1], rd[2], rd[6], rd[7], rd[4], rd[5], rd[8], rd[9]]
        seq = [(30,4,0), (30,4,1), (30,0,0), (30,2,0), (31,4,0), (31,4,1), (31,0,0), (31,2,0),
               (30,0,1), (30,2,1), (31,0,1), (31,2,1),
               (30,1,0), (30,3,0), (31,1,0), (31,3,0),
               (30,1,1), (30,3,1), (31,1,1), (31,3,1)]
        ez = (lambda t: epi_V(4, t, 60)) if var == "V" else (lambda t: epi_T(4, t, 66, 60))
        if kind == "H":
            eh = lambda ct, t: epi_H(ct, t)
        else:
            eh = lambda ct, t: epi_T(ct, t, 68, 61 + ct) + epi_T(ct + 2, t, 70, 63 + ct)
        q = [(6, ez(0)), (7, ez(1)), (9, eh(0, 0)), (13, eh(0, 1)), (17, eh(1, 0)), (99, eh(1, 1))]
        pend = []
        per = 6 if kind == "H" else 9
        for n, (k, i, t) in enumerate(seq):
            lg.wait(a, ("x", k, t), ("w", k, i))
            a(mfma(k, i, t, var))
            for _ in range(3):
                if rd:
                    s, tag = rd.pop(0); a(s); lg.issue(tag)
            while q and q[0][0] <= n: pend += q.pop(0)[1]
            for _ in range(per):
                if pend: a(pend.pop(0))
        for _, l in q: pend += l
        for s in pend: a(s)
        if STAMP:
            stamp(a, 6)
            a("s_waitcnt vmcnt(0)")
            stamp(a, 7)
            stamp_out(a, 0)
        a("s_endpgm")
    for var in "TV":
        if var == "V": a("K1_CV:")
        lg = LG()
        a("s_barrier")
        stamp(a, 1)
        for s, tag in reads(0): a(s); lg.issue(tag)
        for k in range(30):
            rd = reads(k + 1)
            n = 0
            for i in range(5):
                for t in range(2):
                    lg.wait(a, ("x", k, t), ("w", k, i))
                    a(mfma(k, i, t, var))
                    if k % 2 == 1 and n == 1:
                        lg.wait_all(a)
                        a("s_barrier")
                        if k in (7, 15, 23, 29) and STAMP:
                            stamp(a, {7: 2, 15: 3, 23: 4, 29: 5}[k])
                    if k % 2 == 0 or n >= 1:
                        for _ in range(2):
                            if rd:
                                s, tag = rd.pop(0); a(s); lg.issue(tag)
                    n += 1
            assert not rd
        if var == "T":
            a("s_cmp_eq_u32 s47, 3")
            a("s_cselect_b32 s52, 0, 1")
            a("s_or_b32 s52, s52, s56")
            a("s_cmp_eq_u32 s52, 0")
            a("s_cbranch_scc1 K1_FQ")
            final(lg, "T", "H")
            a("K1_FQ:")
            final(lg, "T", "Q")
        else:
            final(lg, "V", "H")
    a("K1_END:")
    a("s_endpgm")
    return N, 240, (256, 512, 151552)

GRING = 131072; SYNC = GRING + 28672
O_AC = 0
O_GC = 8
O_MF = 16
VL = 1; VL16 = 2; VS = 3; VONE = 4; VHI = 5; VT = 6; VT2 = 7
AQ = [8, 12]; KA = [16, 17]; VA = [18, 19]; KW = 20; VVB = 21; AT0 = 22; AT1 = 23
AC = [24, 40]; AS = [56, 72]; AO = [88, 104]; AK = [120, 124]; AV = [128, 136]; AP = [144, 152]

def gen_k2(a):
    N = "k2_kernel"
    header(a, N)
    a("s_cmp_ge_u32 s2, 256")
    a("s_cbranch_scc1 K2_END")
    a("s_load_dwordx2 s[10:11], s[0:1], 80")
    a("s_load_dwordx2 s[16:17], s[0:1], 48")
    a("v_lshrrev_b32 v8, 6, v0")
    a(f"v_and_b32 v{VL}, 63, v0")
    a("v_readfirstlane_b32 s44, v8")
    a("s_and_b32 s50, s2, 7")
    a("s_lshr_b32 s51, s2, 3")
    a("s_lshl_b32 s47, s50, 2")
    a("s_and_b32 s52, s51, 3")
    a("s_add_u32 s47, s47, s52")
    a("s_lshr_b32 s48, s51, 2")
    a(f"v_lshlrev_b32 v{VL16}, 4, v{VL}")
    a(f"s_mov_b32 s3, {SPIN}")
    a("s_cmp_ge_u32 s44, 8")
    a("s_cbranch_scc1 K2_G")
    gen_attn(a)
    a("K2_G:")
    gen_down(a)
    a("K2_END:")
    a("s_endpgm")
    return N, 168, (256, 768, 163840)

def gen_attn(a):
    C = AC; S = AS; O = AO; KF_ = AK; VF_ = AV; P = AP; Q = AQ
    a("s_and_b32 s53, s44, 3")
    a("s_lshr_b32 s52, s44, 2")
    a("s_lshl_b32 s63, s53, 1")
    a("s_add_u32 s63, s63, s52")
    a("s_lshl_b32 s64, s48, 3")
    a("s_add_u32 s63, s63, s64")
    a("s_lshl_b32 s56, s47, 16")
    a("s_lshl_b32 s57, s63, 10")
    a("s_add_u32 s57, s57, s56")
    a("s_xor_b32 s58, s57, 1024")
    a("s_lshl_b32 s59, s52, 15")
    a("s_add_u32 s56, s56, s59")
    a(f"s_add_u32 s56, s56, {hex(WS_KF)}")
    a("s_lshl_b32 s59, s53, 10")
    a("s_add_u32 s62, s56, s59")
    a("s_add_u32 s61, s62, 0x200000")
    a("s_lshl_b32 s66, s52, 13")
    a("s_add_u32 s60, s66, s59")
    a("s_mov_b32 m0, s60")
    a(f"v_mov_b32 v{VS}, {SYNC}")
    a(f"v_mov_b32 v{VT}, 0")
    a(f"v_lshl_add_u32 v{VT2}, v{VL}, 2, v{VS}")
    a(f"ds_write_b32 v{VT2}, v{VT}")
    stamp_init(a)
    a("s_waitcnt lgkmcnt(0)")
    stamp(a, 0)
    srd(a, 28, 10, WS_SIZE)
    vm = VM()
    T0 = S[1]
    a(f"buffer_load_dwordx4 {vr(T0,4)}, v{VL16}, s[28:31], s62 offen"); vm.issue()
    a(f"buffer_load_dwordx4 {vr(Q[0],4)}, v{VL16}, s[28:31], s57 offen"); vm.issue()
    a(f"buffer_load_dwordx4 {vr(Q[1],4)}, v{VL16}, s[28:31], s58 offen"); vm.issue("q")
    def kvdma(s):
        a(f"buffer_load_dwordx4 v{VL16}, s[28:31], s62 offen lds"); vm.issue()
        a(f"s_add_u32 m0, m0, 4096")
        a("s_add_u32 s62, s62, 4096")
        a(f"buffer_load_dwordx4 v{VL16}, s[28:31], s61 offen lds"); vm.issue(("st", s))
        if s < 7:
            a(f"s_add_u32 m0, m0, 12288")
            a("s_add_u32 s61, s61, 4096")
    kvdma(0); kvdma(1)
    a("s_barrier")
    stamp(a, 1)
    a(f"v_mov_b32 v{VONE}, 1")
    a(f"v_lshrrev_b32 v{VHI}, 5, v{VL}")
    a(f"v_and_b32 v{VT}, 27, v{VL}")
    a(f"v_mov_b32 v{VT2}, 0x3f803f80")
    a(f"v_cmp_eq_u32 vcc, 16, v{VT}")
    a(f"v_cndmask_b32 v{VT2}, 0, v{VT2}, vcc")
    for i in range(16): a(f"v_mov_b32 v{VF_[0]+i}, v{VT2}")
    a(f"v_add_u32 v{KA[0]}, s66, v{VL16}")
    a(f"v_add_u32 v{KA[1]}, 0x10000, v{KA[0]}")
    a(f"v_and_b32 v{VT}, 15, v{VL}")
    a(f"v_lshlrev_b32 v{VT}, 4, v{VT}")
    a(f"v_lshl_add_u32 v{VVB}, v{VHI}, 8, v{VT}")
    a("s_add_u32 s67, s66, 4096")
    a(f"v_add_u32 v{VA[0]}, s67, v{VVB}")
    a(f"v_add_u32 v{VA[1]}, 0x10000, v{VA[0]}")
    a("s_mov_b32 s68, 0x0000ffff")
    a("s_mov_b32 s69, 0x0000ffff")
    a("s_lshl_b32 s66, s52, 2")
    a(f"v_add_u32 v0, s66, v{VS}")
    a("s_lshl_b32 s64, s63, 15")
    a("s_lshl_b32 s65, s47, 10")
    a("s_add_u32 s64, s64, s65")
    a(f"s_add_u32 s64, s64, {hex(WS_OF)}")
    vm.wait(a, "q")
    stamp(a, 2)
    a(f"v_mfma_f32_32x32x16_bf16 {vr(C[0],16)}, {vr(T0,4)}, {vr(Q[0],4)}, 0")
    a(f"v_mfma_f32_32x32x16_bf16 {vr(C[1],16)}, {vr(T0,4)}, {vr(Q[1],4)}, 0")
    for h in range(2):
        m = AT0 + h
        a(f"v_max3_f32 v{m}, v{C[h]}, v{C[h]+1}, v{C[h]+2}")
        for i in range(3, 15, 2):
            a(f"v_max3_f32 v{m}, v{m}, v{C[h]+i}, v{C[h]+i+1}")
        a(f"v_max_f32 v{m}, v{m}, v{C[h]+15}")
        a(f"v_mov_b32 v{VT}, v{m}")
        a(f"v_permlane32_swap_b32 v{m}, v{VT}")
        a(f"v_max_f32 v{m}, v{m}, v{VT}")
        for i in range(16): a(f"v_mul_f32 v{C[h]+i}, -1.0, v{m}")
    vm.wait(a, ("st", 0))
    lds_arrive(a, O_AC, 0, VONE)
    lds_wait(a, O_AC, "4", 0, AT0, sleep=0)
    stamp(a, 3)
    if OPT['yp']:
        a("s_cmp_eq_u32 s52, 0")
        a("s_cbranch_scc1 A_OLD")
        a("s_setprio 1")
        a("A_OLD:")
    def rdK(t):
        a(f"ds_read_b128 {vr(KF_[t%2],4)}, v{KA[t//16]} offset:{((t//4)%4)*16384 + (t%4)*1024}")
    def rdV(t):
        o = ((t//4)%4)*16384 + (t%4)*1024
        a("s_mov_b64 exec, s[68:69]")
        a(f"ds_read_b128 {vr(VF_[t%2],4)}, v{VA[t//16]} offset:{o}")
        a(f"ds_read_b128 {vr(VF_[t%2]+4,4)}, v{VA[t//16]} offset:{o+512}")
        a("s_mov_b64 exec, -1")
    def mS(u):
        t, h = u // 2, u % 2
        a(f"v_mfma_f32_32x32x16_bf16 {vr(S[h],16)}, {vr(KF_[t%2],4)}, {vr(Q[h],4)}, {vr(C[h],16)}")
    def mPV(u, j, first=False):
        t, h = u // 2, u % 2
        a(f"v_mfma_f32_32x32x16_bf16 {vr(O[h],16)}, {vr(VF_[t%2]+4*j,4)}, {vr(P[h]+4*j,4)}, {'0' if first else vr(O[h],16)}")
    def ex(u, i): a(f"v_exp_f32 v{S[u%2]+i}, v{S[u%2]+i}")
    def cv(u, i): a(f"v_cvt_pk_bf16_f32 v{P[u%2]+i}, v{S[u%2]+2*i}, v{S[u%2]+2*i+1}")
    rdK(0); rdV(0)
    a("s_waitcnt lgkmcnt(2)")
    mS(0)
    SY = {0: (1, 8), 1: (3, 12), 3: (7, 16)}
    slow = []
    for u in range(64):
        t, h = u // 2, u % 2
        s, uu = u // 8, u % 8
        ex(u, 0); ex(u, 1)
        if u > 0: mPV(u - 1, 1)
        ex(u, 2); ex(u, 3); ex(u, 4)
        if h == 1: a("s_waitcnt lgkmcnt(0)")
        if u < 63: mS(u + 1)
        if h == 0 and t < 31:
            rdK(t + 1); rdV(t + 1)
        if u < 6: kvdma(u + 2)
        if s in SY:
            if uu == 1:
                vm.wait(a, ("st", SY[s][0]))
                lds_arrive(a, O_AC, 0, VONE)
            if uu == 4:
                a(f"ds_read_b32 v{AT0}, v0 offset:{O_AC}")
            if uu == 5:
                a(f"v_readfirstlane_b32 s70, v{AT0}")
                a(f"s_cmp_ge_u32 s70, {SY[s][1]}")
                a(f"s_cbranch_scc0 A_SLOW{s}")
                a(f"A_OK{s}:")
                slow.append(s)
        if s == 6 and uu == 1:
            lds_arrive(a, O_AC, 0, VONE)
        if OPT['yp'] and u == OPT['yp']: a("s_setprio 0")
        if u in (16, 32, 48): stamp(a, 3 + u // 16)
        ex(u, 5); ex(u, 6); ex(u, 7); ex(u, 8)
        for i in range(4): cv(u, i)
        ex(u, 9); ex(u, 10); ex(u, 11)
        if u == 0: a("s_waitcnt lgkmcnt(3)")
        mPV(u, 0, first=(u < 2))
        for i in range(12, 16): ex(u, i)
        for i in range(4, 8): cv(u, i)
    a(f"ds_read_b32 v{AT0}, v0 offset:{O_AC}")
    mPV(63, 1)
    a("s_setprio 1")
    stamp(a, 7)
    a("s_lshr_b32 s66, s53, 1")
    a("s_lshl_b32 s66, s66, 14")
    a("s_and_b32 s67, s53, 1")
    a("s_lshl_b32 s67, s67, 12")
    a("s_add_u32 s66, s66, s67")
    a("s_lshl_b32 s67, s52, 13")
    a("s_add_u32 s66, s66, s67")
    a("s_add_u32 s66, s66, 49152")
    a(f"v_add_u32 v{KW}, s66, v{VL16}")
    a("s_lshl_b32 s66, s44, 2")
    a(f"v_add_u32 v{KA[0]}, s66, v{VS}")
    a("s_waitcnt lgkmcnt(0)")
    a(f"v_readfirstlane_b32 s70, v{AT0}")
    a("s_cmp_ge_u32 s70, 20")
    a("s_cbranch_scc0 A_SLOW9")
    a("A_OK9:")
    a("s_mov_b32 s70, 0x4f800000")
    a(f"v_cmp_gt_f32 vcc, s70, v{O[0]+8}")
    a(f"v_cmp_gt_f32 s[66:67], s70, v{O[1]+8}")
    a("s_and_b64 vcc, vcc, s[66:67]")
    a("s_cmp_eq_u64 vcc, -1")
    a("s_cbranch_scc0 A_FALL")
    a("A_FIN:")
    a(f"v_mov_b32 v{O[1]+9}, v{C[1]}")
    a(f"ds_write_b128 v{KW}, {vr(O[1],4)}")
    a(f"ds_write_b128 v{KW}, {vr(O[1]+4,4)} offset:1024")
    a(f"ds_write_b64 v{KW}, {vr(O[1]+8,2)} offset:2048")
    a("s_mov_b64 exec, 1")
    a(f"ds_write_b32 v{KA[0]}, v{VONE} offset:{O_MF}")
    a("s_mov_b64 exec, -1")
    a(f"v_xor_b32 v{KA[0]}, 16, v{KA[0]}")
    a(f"v_xor_b32 v{KW}, 0x2000, v{KW}")
    lds_wait(a, O_MF, "1", KA[0], VT, sleep=0)
    R = S[0]
    a(f"ds_read_b64 {vr(R+8,2)}, v{KW} offset:2048")
    a(f"ds_read_b128 {vr(R,4)}, v{KW}")
    a(f"ds_read_b128 {vr(R+4,4)}, v{KW} offset:1024")
    a("s_waitcnt lgkmcnt(2)")
    a(f"v_min_f32 v{AT0}, v{C[0]}, v{R+9}")
    a(f"v_sub_f32 v{AT1}, v{AT0}, v{R+9}")
    a(f"v_sub_f32 v{AT0}, v{AT0}, v{C[0]}")
    a(f"v_exp_f32 v{AT0}, v{AT0}")
    a(f"v_exp_f32 v{AT1}, v{AT1}")
    a(f"v_mul_f32 v{VT}, v{AT0}, v{O[0]+8}")
    a(f"v_fma_f32 v{VT}, v{AT1}, v{R+8}, v{VT}")
    a(f"v_rcp_f32 v{VT}, v{VT}")
    a(f"v_mul_f32 v{AT0}, v{AT0}, v{VT}")
    a(f"v_mul_f32 v{AT1}, v{AT1}, v{VT}")
    for i in range(8): a(f"v_mul_f32 v{O[0]+i}, v{AT0}, v{O[0]+i}")
    a("s_waitcnt lgkmcnt(0)")
    for i in range(8): a(f"v_fma_f32 v{O[0]+i}, v{AT1}, v{R+i}, v{O[0]+i}")
    for i in range(4): a(f"v_cvt_pk_bf16_f32 v{P[0]+i}, v{O[0]+2*i}, v{O[0]+2*i+1}")
    a(f"buffer_store_dwordx4 {vr(P[0],4)}, v{VL16}, s[28:31], s64 offen{SC()}")
    if STAMP:
        stamp(a, 8)
        a("s_waitcnt vmcnt(0)")
        stamp(a, 9)
        stamp_out(a, 1)
    a("s_endpgm")
    for s in slow + [9]:
        a(f"A_SLOW{s}:")
        lds_wait(a, O_AC, str(SY[s][1] if s in SY else 20), 0, AT0, sleep=1)
        a(f"s_branch A_OK{s}")
    a("A_FALL:")
    a("s_mov_b32 s62, s56")
    a("s_mov_b32 s54, 0")
    a(f"v_mov_b32 v{AT0}, 0xff800000")
    a(f"v_mov_b32 v{AT1}, 0xff800000")
    a("A_MAXL:")
    a(f"buffer_load_dwordx4 {vr(KF_[0],4)}, v{VL16}, s[28:31], s62 offen")
    a("s_waitcnt vmcnt(0)")
    for h in range(2):
        a(f"v_mfma_f32_32x32x16_bf16 {vr(S[h],16)}, {vr(KF_[0],4)}, {vr(Q[h],4)}, 0")
    a("s_add_u32 s62, s62, 1024")
    for h in range(2):
        for i in range(8):
            a(f"v_max3_f32 v{AT0+h}, v{S[h]+2*i}, v{S[h]+2*i+1}, v{AT0+h}")
    a("s_add_u32 s54, s54, 1")
    a("s_cmp_lt_u32 s54, 32")
    a("s_cbranch_scc1 A_MAXL")
    for h in range(2):
        m = AT0 + h
        a(f"v_mov_b32 v{VT}, v{m}")
        a(f"v_permlane32_swap_b32 v{m}, v{VT}")
        a(f"v_max_f32 v{m}, v{m}, v{VT}")
        for i in range(16): a(f"v_mul_f32 v{C[h]+i}, -1.0, v{m}")
    for i in range(32): a(f"v_mov_b32 v{O[0]+i}, 0")
    a("s_mov_b32 s62, s56")
    a("s_add_u32 s63, s56, 0x200000")
    a("s_mov_b32 s54, 0")
    a("A_FBL:")
    a(f"buffer_load_dwordx4 {vr(KF_[0],4)}, v{VL16}, s[28:31], s62 offen")
    a("s_mov_b64 exec, s[68:69]")
    a(f"buffer_load_dwordx4 {vr(VF_[0],4)}, v{VVB}, s[28:31], s63 offen")
    a(f"buffer_load_dwordx4 {vr(VF_[0]+4,4)}, v{VVB}, s[28:31], s63 offen offset:512")
    a("s_mov_b64 exec, -1")
    a("s_waitcnt vmcnt(0)")
    mS(0); mS(1)
    a("s_add_u32 s62, s62, 1024")
    a("s_add_u32 s63, s63, 1024")
    for u in range(2):
        for i in range(16): ex(u, i)
        for i in range(8): cv(u, i)
        mPV(u, 0); mPV(u, 1)
    a("s_nop 7"); a("s_nop 7")
    a("s_add_u32 s54, s54, 1")
    a("s_cmp_lt_u32 s54, 32")
    a("s_cbranch_scc1 A_FBL")
    a("s_branch A_FIN")

def gen_down(a):
    D0 = 8; GV = 9; TR0 = 10; TR1 = 11
    WF = [32, 40]; BR = 48; ACC = 104
    a("s_and_b32 s56, s44, 3")
    a(f"v_lshrrev_b32 v20, 3, v{VL}")
    a(f"v_bfe_u32 v21, v{VL}, 4, 1")
    a("v_lshlrev_b32 v21, 2, v21")
    a(f"v_and_b32 v22, 7, v{VL}")
    a("v_xor_b32 v21, v21, v22")
    a("v_lshlrev_b32 v20, 10, v20")
    a(f"v_lshl_add_u32 v{D0}, v21, 4, v20")
    a("s_lshl_b32 s59, s48, 7")
    a("s_mul_i32 s62, s56, 458752")
    a("s_add_u32 s62, s62, s59")
    a("s_lshl_b32 s67, s56, 10")
    a(f"s_add_u32 s67, s67, {GRING}")
    a("s_mul_i32 s64, s47, 229376")
    a("s_mul_i32 s65, s56, 28672")
    a("s_add_u32 s64, s64, s65")
    a(f"s_add_u32 s64, s64, {hex(WS_HF)}")
    a("s_add_u32 s65, s64, 114688")
    stamp_init(a)
    a("s_waitcnt lgkmcnt(0)")
    stamp(a, 0)
    srd(a, 24, 16, 0x1c0000)
    srd(a, 28, 10, WS_SIZE)
    vm = VM(); lg = LG()
    def wdma(u):
        a(f"s_add_u32 m0, s67, {(u % 7)*4096}")
        a(f"buffer_load_dwordx4 v{D0}, s[24:27], s62 offen lds"); vm.issue(("u", u))
        a("s_add_u32 s62, s62, 8192")
    def bload(s):
        sl = s % 7
        a(f"buffer_load_dwordx4 {vr(BR+8*sl,4)}, v{VL16}, s[28:31], s64 offen offset:{(s%4)*1024}"); vm.issue()
        a(f"buffer_load_dwordx4 {vr(BR+8*sl+4,4)}, v{VL16}, s[28:31], s65 offen offset:{(s%4)*1024}"); vm.issue(("b", s))
        if s % 4 == 3:
            a("s_add_u32 s64, s64, 4096")
            a("s_add_u32 s65, s65, 4096")
    def rd(s):
        w = WF[s % 2]
        u0 = (2*s) % 7; u1 = (2*s + 1) % 7
        for ct, tr in ((0, TR0), (1, TR1)):
            a(f"ds_read_b64_tr_b16 {vr(w+4*ct,2)}, v{tr} offset:{u0*4096}"); lg.issue()
            a(f"ds_read_b64_tr_b16 {vr(w+4*ct+2,2)}, v{tr} offset:{u1*4096}"); lg.issue(("w", s))
    a("s_barrier")
    wdma(0); wdma(1); bload(0); wdma(2); wdma(3); bload(1); wdma(4); wdma(5); bload(2); wdma(6)
    for s in range(3, 6): bload(s)
    stamp(a, 1)
    a(f"v_mov_b32 v{VS}, {SYNC}")
    a(f"v_mov_b32 v{VONE}, 1")
    a(f"v_lshrrev_b32 v{VHI}, 5, v{VL}")
    a(f"v_bfe_u32 v20, v{VL}, 2, 2")
    a(f"v_lshl_add_u32 v20, v{VHI}, 2, v20")
    a("v_lshlrev_b32 v20, 7, v20")
    a(f"v_bfe_u32 v21, v{VL}, 3, 1")
    a("v_lshl_add_u32 v20, v21, 6, v20")
    a(f"v_bfe_u32 v21, v{VL}, 4, 1")
    a("v_lshl_add_u32 v20, v21, 5, v20")
    a(f"v_and_b32 v21, 3, v{VL}")
    a("v_lshl_add_u32 v12, v21, 3, v20")
    a(f"v_add_u32 v{TR0}, s67, v12")
    a(f"v_xor_b32 v{TR1}, 64, v{TR0}")
    a("s_and_b32 s57, s56, 1")
    a("s_lshl_b32 s58, s47, 1")
    a("s_add_u32 s57, s57, s58")
    a("s_lshl_b32 s57, s57, 7")
    a(f"s_add_u32 s57, s57, {hex(WS_G)}")
    a(f"v_and_b32 v20, 31, v{VL}")
    a("v_lshlrev_b32 v13, 2, v20")
    a("s_lshl_b32 s58, s47, 3")
    a("s_add_u32 s58, s58, s48")
    a("s_lshl_b32 s58, s58, 13")
    a("s_lshl_b32 s60, s56, 11")
    a("s_add_u32 s58, s58, s60")
    a(f"s_add_u32 s58, s58, {hex(WS_BP)}")
    if OPT['gprio']: a(f"s_setprio {OPT['gprio']}")
    stamp(a, 2)
    vm.wait(a, ("u", 1))
    rd(0)
    for s in range(28):
        if s + 1 < 28:
            vm.wait(a, ("u", 2*s + 3))
            rd(s + 1)
        lg.wait(a, ("w", s))
        for u in (2*s + 7, 2*s + 8):
            if u < 56: wdma(u)
        vm.wait(a, ("b", s))
        w = WF[s % 2]; sl = s % 7
        for ct in range(2):
            for tt in range(2):
                acc = vr(ACC + 16 * (2*ct + tt), 16)
                a(f"v_mfma_f32_32x32x16_bf16 {acc}, {vr(w+4*ct,4)}, {vr(BR+8*sl+4*tt,4)}, {'0' if s == 0 else acc}")
        if s + 6 < 28: bload(s + 6)
        if s == 22:
            a(f"buffer_load_dword v{GV}, v13, s[28:31], s57 offen"); vm.issue("g")
        if s == 13: stamp(a, 3)
    stamp(a, 4)
    L = uid("GW"); D = uid("GD")
    a(f"{L}:")
    a(f"ds_read_b64 v[20:21], v{VS} offset:{O_AC}")
    a("s_waitcnt lgkmcnt(0)")
    a("v_min_u32 v20, v20, v21")
    a("v_readfirstlane_b32 s70, v20")
    a("s_cmp_ge_u32 s70, 16")
    a(f"s_cbranch_scc1 {D}")
    budget(a, 1, D)
    a("s_sleep 8")
    a(f"s_branch {L}")
    a(f"{D}:")
    stamp(a, 5)
    XB = 0
    for q in range(4):
        sk = uid("XS")
        a(f"s_cmp_eq_u32 s56, {q}")
        a(f"s_cbranch_scc1 {sk}")
        a(f"s_sub_u32 s66, s56, {q+1}")
        a("s_and_b32 s66, s66, 3")
        a("s_lshl_b32 s66, s66, 12")
        a(f"s_add_u32 s66, s66, {XB + q*12288}")
        a(f"v_add_u32 v13, s66, v{VL16}")
        for i in range(4):
            a(f"ds_write_b128 v13, {vr(ACC+16*q+4*i,4)} offset:{i*1024}")
        a(f"s_branch {sk}_e")
        a(f"{sk}:")
        for i in range(16): a(f"v_mov_b32 v{16+i}, v{ACC+16*q+i}")
        a(f"{sk}_e:")
    lds_arrive(a, O_GC, VS, VONE)
    lds_wait(a, O_GC, "4", VS, VT, sleep=1)
    BP = 16
    a("s_mul_i32 s66, s56, 12288")
    a(f"v_add_u32 v13, s66, v{VL16}")
    for t in range(3):
        for i in range(4):
            a(f"ds_read_b128 {vr(ACC+16*t+4*i,4)}, v13 offset:{XB + t*4096 + i*1024}")
    a("s_waitcnt vmcnt(0)")
    a(f"v_sub_f32 v10, 1.0, v{GV}")
    a("v_cvt_pk_bf16_f32 v10, v10, v10")
    a("v_and_b32 v10, 0xffff0000, v10")
    a("s_waitcnt lgkmcnt(0)")
    for i in range(16):
        a(f"v_add_f32 v{ACC+i}, v{ACC+i}, v{ACC+16+i}")
        a(f"v_add_f32 v{BP+i}, v{BP+i}, v{ACC+32+i}")
    for i in range(16):
        a(f"v_add_f32 v{BP+i}, v{BP+i}, v{ACC+i}")
    for i in range(16):
        a(f"v_mul_f32 v{BP+i}, v10, v{BP+i}")
    for i in range(8):
        a(f"v_cvt_pk_bf16_f32 v{BP+i}, v{BP+2*i}, v{BP+2*i+1}")
    a(f"buffer_store_dwordx4 {vr(BP,4)}, v{VL16}, s[28:31], s58 offen{SC()}")
    a(f"buffer_store_dwordx4 {vr(BP+4,4)}, v{VL16}, s[28:31], s58 offen offset:1024{SC()}")
    if STAMP:
        stamp(a, 8)
        a("s_waitcnt vmcnt(0)")
        stamp(a, 9)
        stamp_out(a, 1)

def gen_k3(a):
    N = "k3_kernel"
    header(a, N)
    a("s_cmp_ge_u32 s2, 256")
    a("s_cbranch_scc1 K3_END")
    a("s_load_dwordx2 s[10:11], s[0:1], 80")
    a("s_load_dwordx2 s[8:9], s[0:1], 16")
    a("s_load_dwordx2 s[20:21], s[0:1], 64")
    a("v_lshrrev_b32 v8, 6, v0")
    a(f"v_and_b32 v{VL}, 63, v0")
    a("v_readfirstlane_b32 s44, v8")
    a("s_and_b32 s50, s2, 7")
    a("s_lshr_b32 s51, s2, 3")
    a("s_lshl_b32 s47, s50, 2")
    a("s_and_b32 s52, s51, 3")
    a("s_add_u32 s47, s47, s52")
    a("s_lshr_b32 s48, s51, 2")
    a(f"v_lshlrev_b32 v{VL16}, 4, v{VL}")
    D0 = 8
    a(f"v_lshrrev_b32 v20, 3, v{VL}")
    a(f"v_bfe_u32 v21, v{VL}, 4, 1")
    a("v_lshlrev_b32 v21, 2, v21")
    a(f"v_and_b32 v22, 7, v{VL}")
    a("v_xor_b32 v21, v21, v22")
    a("v_lshlrev_b32 v20, 10, v20")
    a(f"v_lshl_add_u32 v{D0}, v21, 4, v20")
    a("s_lshl_b32 s52, s44, 13")
    a("s_lshl_b32 s53, s47, 16")
    a("s_add_u32 s53, s53, s52")
    a(f"s_add_u32 s53, s53, {hex(WS_OF)}")
    a("s_lshr_b32 s54, s44, 1")
    a("s_lshl_b32 s54, s54, 4")
    a("s_and_b32 s55, s44, 1")
    a("s_add_u32 s54, s54, s55")
    a("s_lshl_b32 s55, s54, 10")
    a("s_add_u32 s55, s55, 65536")
    a("s_lshl_b32 s54, s54, 13")
    a("s_lshl_b32 s59, s48, 7")
    a("s_add_u32 s54, s54, s59")
    a("s_mov_b32 m0, s52")
    stamp_init(a)
    a("s_waitcnt lgkmcnt(0)")
    stamp(a, 0)
    srd(a, 28, 10, WS_SIZE)
    srd(a, 32, 8, 0x80000)
    vm = VM()
    for s in range(8):
        if s > 0: a(f"s_add_u32 m0, s52, {(s//4)*4096}")
        a(f"buffer_load_dwordx4 v{VL16}, s[28:31], s53 offen offset:{(s%4)*1024} lds"); vm.issue()
        a(f"s_add_u32 m0, s55, {s*2048}")
        a(f"buffer_load_dwordx4 v{D0}, s[32:35], s54 offen lds"); vm.issue(("st", s))
        if s < 7: a("s_add_u32 s54, s54, 16384")
        if s == 3: a("s_add_u32 s53, s53, 4096")
    stamp(a, 1)
    a("s_cmp_ge_u32 s44, 4")
    a("s_cbranch_scc1 K3_COMP")
    import copy
    vm2 = copy.deepcopy(vm)
    for s in range(8):
        vm2.wait(a, ("st", s))
        a("s_barrier")
    if STAMP:
        stamp(a, 2)
        stamp_out(a, 2)
    a("s_endpgm")
    a("K3_COMP:")
    BPR = 24; GV = 9; OA = 10; TR = 11; OUTA = 14; BF = 32; ACC = 48; FR = [64, 96]
    a("s_and_b32 s56, s44, 3")
    a("s_and_b32 s57, s56, 1")
    a("s_lshr_b32 s58, s56, 1")
    a("s_lshl_b32 s60, s47, 3")
    a("s_add_u32 s60, s60, s48")
    a("s_lshl_b32 s60, s60, 13")
    a("s_lshl_b32 s61, s56, 11")
    a("s_add_u32 s60, s60, s61")
    a(f"s_add_u32 s60, s60, {hex(WS_BP)}")
    a(f"buffer_load_dwordx4 {vr(BPR,4)}, v{VL16}, s[28:31], s60 offen"); vm.issue()
    a(f"buffer_load_dwordx4 {vr(BPR+4,4)}, v{VL16}, s[28:31], s60 offen offset:1024"); vm.issue()
    a("s_lshl_b32 s61, s47, 1")
    a("s_add_u32 s61, s61, s57")
    a("s_lshl_b32 s62, s61, 7")
    a(f"s_add_u32 s62, s62, {hex(WS_G)}")
    a(f"v_and_b32 v20, 31, v{VL}")
    a("v_lshlrev_b32 v13, 2, v20")
    a(f"buffer_load_dword v{GV}, v13, s[28:31], s62 offen"); vm.issue("g")
    srd(a, 36, 20, 0x200000)
    a(f"v_lshrrev_b32 v{VHI}, 5, v{VL}")
    a(f"v_lshlrev_b32 v{OUTA}, 10, v20")
    a(f"v_lshl_add_u32 v{OUTA}, v{VHI}, 4, v{OUTA}")
    a("s_lshl_b32 s63, s61, 15")
    a("s_add_u32 s63, s63, s59")
    a("s_lshl_b32 s64, s58, 6")
    a("s_add_u32 s63, s63, s64")
    a("s_lshl_b32 s65, s57, 15")
    a(f"v_add_u32 v{OA}, s65, v{VL16}")
    a(f"v_bfe_u32 v12, v{VL}, 2, 2")
    a(f"v_lshl_add_u32 v12, v{VHI}, 2, v12")
    a("v_lshlrev_b32 v12, 7, v12")
    a(f"v_bfe_u32 v15, v{VL}, 3, 1")
    a("v_lshl_add_u32 v12, v15, 6, v12")
    a(f"v_bfe_u32 v15, v{VL}, 4, 1")
    a("v_lshl_add_u32 v12, v15, 5, v12")
    a(f"v_and_b32 v15, 3, v{VL}")
    a("v_lshl_add_u32 v12, v15, 3, v12")
    a("v_xor_b32 v12, s64, v12")
    a(f"v_add_u32 v{TR}, 0x10000, v12")
    lg = LG()
    def rd(s):
        f = FR[s % 2]
        for j in range(4):
            hd = 8*j + s
            a(f"ds_read_b128 {vr(f+8*j,4)}, v{OA} offset:{hd*1024}"); lg.issue()
            a(f"ds_read_b64_tr_b16 {vr(f+8*j+4,2)}, v{TR} offset:{hd*2048}"); lg.issue()
            a(f"ds_read_b64_tr_b16 {vr(f+8*j+6,2)}, v{TR} offset:{hd*2048+1024}"); lg.issue(("f", s, j))
    def mm(s):
        f = FR[s % 2]
        for j in range(4):
            lg.wait(a, ("f", s, j))
            a(f"v_mfma_f32_32x32x16_bf16 {vr(ACC,16)}, {vr(f+8*j+4,4)}, {vr(f+8*j,4)}, {'0' if (s == 0 and j == 0) else vr(ACC,16)}")
    for s in range(8):
        vm.wait(a, ("st", s))
        a("s_barrier")
        if s == 0: stamp(a, 2)
        if s == 7: stamp(a, 3)
        rd(s)
        if s > 0: mm(s - 1)
    vm.wait(a, "g")
    for i in range(8):
        a(f"v_lshlrev_b32 v{BF+2*i}, 16, v{BPR+i}")
        a(f"v_and_b32 v{BF+2*i+1}, 0xffff0000, v{BPR+i}")
    mm(7)
    for i in range(16):
        a(f"v_fma_f32 v{BF+i}, v{GV}, v{ACC+i}, v{BF+i}")
    for i in range(8):
        a(f"v_cvt_pk_bf16_f32 v{BPR+i}, v{BF+2*i}, v{BF+2*i+1}")
    for b in (0, 4):
        a(f"v_permlane32_swap_b32 v{BPR+b}, v{BPR+b+2}")
        a(f"v_permlane32_swap_b32 v{BPR+b+1}, v{BPR+b+3}")
    a(f"buffer_store_dwordx4 {vr(BPR,4)}, v{OUTA}, s[36:39], s63 offen")
    a(f"buffer_store_dwordx4 {vr(BPR+4,4)}, v{OUTA}, s[36:39], s63 offen offset:32")
    if STAMP:
        stamp(a, 4)
        a("s_waitcnt vmcnt(0)")
        stamp(a, 5)
        stamp_out(a, 2)
    a("K3_END:")
    a("s_endpgm")
    return N, 128, (256, 512, 131072)

def build(path):
    a = Asm()
    ks = [gen_k1(a), gen_k2(a), gen_k3(a)]
    out = []
    for (n, v, (g, b, l)) in ks:
        out.append(f"; @launch kernel={n} grid=({g},1,1) block=({b},1,1) lds={l}")
    out.append('.amdgcn_target "amdgcn-amd-amdhsa--gfx950"')
    out.append(".text")
    out.append(a.text())
    out.append('.section .rodata,"a"')
    for (n, v, _) in ks:
        out.append(kd(n, v))
    open(path, "w").write("\n".join(out))

if __name__ == "__main__":
    path = sys.argv[1]
    args = sys.argv[2:]
    STAMP = "stamp" in args
    for x in args:
        if "=" in x:
            k, v = x.split("="); OPT[k] = int(v)
    build(path)
```

```python
import sys
from asmlib import *

WS_QF = 0x000000; WS_KF = 0x200000; WS_VF = 0x400000; WS_OF = 0x600000
WS_BP = 0x800000; WS_HF = 0xA00000; WS_G = 0x1100000; WS_ST = 0x1200000
WS_SIZE = 0x2000000
QSCALE = 0x3eb8aa3b
SPIN = 1 << 20

STAMP = False
OPT = dict(qs=0, cyc=0, dbg=0, sc1=1, touch=1, tmod=0, tsl=0, il=1, yp=52, gprio=2, k3ns=8)

def srd(a, sbase, sptr, size):
    a(f"s_mov_b32 s{sbase}, s{sptr}")
    a(f"s_mov_b32 s{sbase+1}, s{sptr+1}")
    a(f"s_mov_b32 s{sbase+2}, {hex(size)}")
    a(f"s_mov_b32 s{sbase+3}, 0x00020000")

def header(a, name):
    a(f".globl {name}"); a(".p2align 8"); a(f".type {name},@function"); a(f"{name}:")

def kd(name, vgpr, sgpr=102):
    acc = (vgpr + 3) // 4 * 4
    return f""".p2align 6
.amdhsa_kernel {name}
  .amdhsa_next_free_vgpr {vgpr}
  .amdhsa_next_free_sgpr {sgpr}
  .amdhsa_accum_offset {acc}
  .amdhsa_group_segment_fixed_size 0
  .amdhsa_kernarg_size 88
  .amdhsa_user_sgpr_count 2
  .amdhsa_user_sgpr_kernarg_segment_ptr 1
  .amdhsa_system_sgpr_workgroup_id_x 1
.end_amdhsa_kernel
"""

NST = 12
def stamp(a, i):
    if not STAMP: return
    a("s_memtime s[76:77]" if OPT['cyc'] else "s_memrealtime s[76:77]")
    a("s_waitcnt lgkmcnt(0)")
    a(f"s_mov_b32 s{78+i}, s76")
def stamp_init(a):
    if not STAMP: return
    for i in range(NST): a(f"s_mov_b32 s{78+i}, 0")
def stamp_out(a, k):
    if not STAMP: return
    a("s_mov_b64 exec, 1")
    a("s_lshl_b32 s72, s2, 10")
    a("s_lshl_b32 s73, s44, 6")
    a("s_add_u32 s72, s72, s73")
    a(f"s_add_u32 s72, s72, {hex(WS_ST + k*0x40000)}")
    a("v_mov_b32 v0, 0")
    for i in range(NST):
        a(f"v_mov_b32 v2, s{78+i}")
        a(f"buffer_store_dword v2, v0, s[28:31], s72 offen offset:{4*i}")
        a("s_nop 1")

_uid = [0]
def uid(p):
    _uid[0] += 1
    return f"{p}_{_uid[0]}"

class Cnt:
    def __init__(self, name, mx): self.n = 0; self.tags = {}; self.done = 0; self.name = name; self.mx = mx
    def issue(self, tag=None):
        self.n += 1
        if tag is not None: self.tags[tag] = self.n
    def cnt(self, tag): return self.n - self.tags[tag]
    def wait(self, a, *tags):
        t = max(self.tags[x] for x in tags)
        if t <= self.done: return
        c = min(self.n - t, self.mx)
        a(f"s_waitcnt {self.name}({c})")
        self.done = self.n - c
    def wait_all(self, a):
        if self.done >= self.n: return
        a(f"s_waitcnt {self.name}(0)"); self.done = self.n
def LG(): return Cnt("lgkmcnt", 15)
def VM(): return Cnt("vmcnt", 63)

def budget(a, n, D):
    a(f"s_sub_u32 s3, s3, {n}")
    a("s_cmp_lt_i32 s3, 0")
    a(f"s_cbranch_scc1 {D}")
def lds_wait(a, off, target, vs, vt, sleep=1, stmp="s70"):
    L = uid("LW"); D = uid("LD")
    a(f"{L}:")
    a(f"ds_read_b32 v{vt}, v{vs} offset:{off}")
    a("s_waitcnt lgkmcnt(0)")
    a(f"v_readfirstlane_b32 {stmp}, v{vt}")
    a(f"s_cmp_ge_u32 {stmp}, {target}")
    a(f"s_cbranch_scc1 {D}")
    budget(a, 1, D)
    if sleep: a(f"s_sleep {sleep}")
    a(f"s_branch {L}")
    a(f"{D}:")
def lds_arrive(a, off, vs, vone):
    a("s_mov_b64 exec, 1")
    a(f"ds_add_u32 v{vs}, v{vone} offset:{off}")
    a("s_mov_b64 exec, -1")

def SC(): return " sc1" if OPT['sc1'] else ""

XR = 0; WR = 49152
def gen_k1(a):
    N = "k1_kernel"
    header(a, N)
    a("s_cmp_ge_u32 s2, 256")
    a("s_cbranch_scc1 K1_END")
    a("s_load_dwordx4 s[4:7], s[0:1], 0")
    a("s_load_dwordx4 s[8:11], s[0:1], 32")
    a("s_load_dwordx2 s[14:15], s[0:1], 80")
    a("s_load_dwordx2 s[12:13], s[0:1], 56")
    a("v_lshrrev_b32 v2, 6, v0")
    a("v_and_b32 v1, 63, v0")
    a("v_readfirstlane_b32 s44, v2")
    a("s_and_b32 s50, s2, 7")
    a("s_lshr_b32 s51, s2, 3")
    a("s_and_b32 s45, s50, 1")
    a("s_lshl_b32 s45, s45, 3")
    a("s_and_b32 s52, s51, 7")
    a("s_add_u32 s45, s45, s52")
    a("s_lshr_b32 s46, s50, 1")
    a("s_lshr_b32 s47, s51, 3")
    a("s_mul_i32 s48, s46, 7")
    a("s_lshl_b32 s52, s47, 1")
    a("s_add_u32 s48, s48, s52")
    a("s_mul_i32 s49, s46, 3")
    a("s_add_u32 s52, s49, s47")
    a("s_add_u32 s53, s52, 16")
    a("s_add_u32 s54, s52, 4")
    a("s_cmp_lt_u32 s52, 8")
    a("s_cselect_b32 s53, s53, s54")
    a("s_add_u32 s54, s49, 2")
    a("s_cmp_eq_u32 s47, 3")
    a("s_cselect_b32 s53, s54, s53")
    a("s_cmp_ge_u32 s44, 4")
    a("s_cbranch_scc1 K1_COMP")
    VX = 4; VW = 8; V4 = 12; T0 = 13; T1 = 14; T2 = 15
    a(f"v_lshrrev_b32 v{T0}, 3, v1")
    a(f"v_and_b32 v{T1}, 7, v1")
    a(f"v_lshrrev_b32 v{T2}, 4, v1")
    a(f"v_xor_b32 v{T2}, v{T1}, v{T2}")
    a(f"v_lshlrev_b32 v{VX}, 10, v{T0}")
    a(f"v_lshl_add_u32 v{VX}, v{T2}, 4, v{VX}")
    a(f"v_xor_b32 v{VX+1}, 64, v{VX}")
    a(f"v_add_u32 v{VX+1}, 0x2000, v{VX+1}")
    a(f"v_add_u32 v{VX+2}, 0x4000, v{VX}")
    a(f"v_add_u32 v{VX+3}, 0x4000, v{VX+1}")
    a("s_lshl_b32 s55, s45, 17")
    a("s_lshl_b32 s56, s44, 15")
    a("s_add_u32 s55, s55, s56")
    a("s_lshl_b32 s56, s44, 12")
    a("s_and_b32 s52, s44, 1")
    a("s_add_u32 s58, s48, s52")
    a("s_cmp_eq_u32 s47, 3")
    a("s_cselect_b32 s58, s48, s58")
    a("s_cselect_b32 s59, 1, 0")
    a("s_andn2_b32 s59, s59, s52")
    a("s_lshr_b32 s52, s44, 1")
    a("s_add_u32 s52, s52, s49")
    a("s_movk_i32 s57, 3584")
    a("s_cmp_eq_u32 s59, 1")
    a("s_cselect_b32 s58, s52, s58")
    a("s_cselect_b32 s57, 3072, s57")
    a("s_lshl_b32 s58, s58, 7")
    a(f"v_bfe_u32 v{T2}, v1, 4, 1")
    a(f"v_lshlrev_b32 v{T2}, 2, v{T2}")
    a(f"v_xor_b32 v{T1}, v{T1}, v{T2}")
    a(f"v_lshlrev_b32 v{T1}, 4, v{T1}")
    a(f"v_mad_u32_u24 v{VW}, v{T0}, s57, v{T1}")
    a("s_lshl_b32 s52, s57, 3")
    for p in range(1, 4): a(f"v_add_u32 v{VW+p}, s52, v{VW+p-1}")
    a("s_lshl_b32 s57, s57, 5")
    a(f"v_mul_u32_u24 v{V4}, 0xc00, v{T0}")
    a(f"v_add_u32 v{V4}, v{V4}, v{T1}")
    a("s_lshl_b32 s60, s53, 7")
    a("s_mul_i32 s52, s44, 24576")
    a("s_add_u32 s60, s60, s52")
    a("s_lshl_b32 s61, s44, 10")
    stamp_init(a)
    a("s_waitcnt lgkmcnt(0)")
    stamp(a, 0)
    srd(a, 24, 4, 0x200000)
    vm = VM()
    def xdma(c):
        for p in range(4):
            a(f"s_add_u32 m0, s56, {XR + (c % 3)*16384 + p*1024}")
            a(f"buffer_load_dwordx4 v{VX+p}, s[24:27], s55 offen lds"); vm.issue(("x", c))
        a("s_add_u32 s55, s55, 128")
    def wdma(d):
        for p in range(4):
            a(f"s_add_u32 m0, s56, {WR + (d % 5)*20480 + p*1024}")
            a(f"buffer_load_dwordx4 v{VW+p}, s[32:35], s58 offen lds"); vm.issue()
        a(f"s_add_u32 m0, s61, {WR + (d % 5)*20480 + 16384}")
        a(f"buffer_load_dwordx4 v{V4}, s[36:39], s60 offen lds"); vm.issue(("w", d))
        a("s_add_u32 s58, s58, s57")
        a("s_add_u32 s60, s60, 98304")
    xdma(0)
    srd(a, 32, 8, 0x1c0000)
    a("s_cmp_lt_u32 s44, 2")
    a("s_cbranch_scc1 K1_LG")
    a("s_mov_b32 s32, s10")
    a("s_mov_b32 s33, s11")
    a("K1_LG:")
    a("s_cmp_eq_u32 s59, 0")
    a("s_cbranch_scc1 K1_LQ")
    a("s_mov_b32 s32, s6")
    a("s_mov_b32 s33, s7")
    a("s_mov_b32 s34, 0x180000")
    a("K1_LQ:")
    srd(a, 36, 6, 0x180000)
    wdma(0); wdma(1); xdma(1); wdma(2)
    if not OPT['il']: wdma(3); xdma(2); wdma(4)
    stamp(a, 1)
    srd(a, 28, 14, WS_SIZE)
    srd(a, 40, 12, 1024)
    GA = 16; GX = 20; GW = 28
    a(f"v_and_b32 v{GA}, 31, v1")
    a(f"v_lshlrev_b32 v{GA}, 5, v{GA}")
    a(f"v_lshrrev_b32 v{GA+2}, 5, v1")
    a(f"v_lshl_add_u32 v{GA+1}, v{GA+2}, 10, v{GA}")
    a(f"v_lshlrev_b32 v{GA+2}, 2, v{GA+2}")
    a("s_lshl_b32 s62, s46, 2")
    a("s_add_u32 s62, s62, s47")
    a("s_lshl_b32 s62, s62, 3")
    a("s_lshl_b32 s63, s45, 7")
    a("s_add_u32 s62, s62, s63")
    a("s_lshl_b32 s63, s44, 1")
    a("s_add_u32 s62, s62, s63")
    a("s_lshl_b32 s63, s62, 10")
    a("s_lshl_b32 s62, s62, 2")
    a(f"s_add_u32 s62, s62, {hex(WS_G)}")
    for d in range(-1, 15):
        tags = [("w", d + 1)]
        if (d + 1) % 2 == 0: tags.append(("x", (d + 1) // 2))
        vm.wait(a, *tags)
        a("s_barrier")
        if d in (-1, 3, 7, 11): stamp(a, 2 + (d + 1) // 4)
        if d == -1 and OPT['il']: wdma(3); xdma(2); wdma(4)
        if d >= 0 and d + 5 <= 15:
            if OPT['dbg'] == 1:
                vm.tags[("w", d+5)] = 1; vm.tags[("x", (d+5)//2)] = 1
            else:
                if d % 2 == 1: xdma((d + 5) // 2)
                wdma(d + 5)
        if d == 10:
            a(f"buffer_load_dwordx4 {vr(GX,4)}, v{GA+1}, s[24:27], s63 offen"); vm.issue()
            a(f"buffer_load_dwordx4 {vr(GX+4,4)}, v{GA+1}, s[24:27], s63 offen offset:16"); vm.issue()
            a(f"buffer_load_dwordx4 {vr(GW,4)}, v{GA}, s[40:43], 0 offen"); vm.issue()
            a(f"buffer_load_dwordx4 {vr(GW+4,4)}, v{GA}, s[40:43], 0 offen offset:16"); vm.issue()
    stamp(a, 6)
    a("v_mov_b32 v2, 0")
    a("s_waitcnt vmcnt(0)")
    for i in range(8):
        a(f"v_dot2_f32_bf16 v2, v{GX+i}, v{GW+i}, v2")
    for sh in (1, 2, 4, 8):
        a(f"v_add_f32_dpp v2, v2, v2 row_shr:{sh} row_mask:0xf bank_mask:0xf bound_ctrl:0")
    a("v_add_f32_dpp v2, v2, v2 row_bcast:15 row_mask:0xa bank_mask:0xf")
    a("v_cvt_pk_bf16_f32 v2, v2, v2")
    a("v_and_b32 v2, 0xffff0000, v2")
    a("v_mul_f32 v2, 0xbfb8aa3b, v2")
    a("v_exp_f32 v2, v2")
    a("v_add_f32 v2, 1.0, v2")
    a("v_rcp_f32 v2, v2")
    a("v_cvt_pk_bf16_f32 v2, v2, v2")
    a("v_and_b32 v2, 0xffff0000, v2")
    a("s_mov_b32 s64, 0x80000000")
    a("s_mov_b32 s65, 0x80000000")
    a("s_mov_b64 exec, s[64:65]")
    a(f"buffer_store_dword v2, v{GA+2}, s[28:31], s62 offen{SC()}")
    if STAMP:
        a("s_waitcnt vmcnt(0)")
        stamp(a, 7)
        stamp_out(a, 0)
    a("s_endpgm")
    a("K1_COMP:")
    a("s_setprio 1")
    if OPT['touch']:
        TM = OPT['tmod']; tm = {0: "", 1: " sc1", 2: " nt", 3: " sc0 sc1"}[TM]
        TA = 232; TD = 234
        a(f"v_lshrrev_b32 v{TA}, 3, v1")
        a(f"v_and_b32 v{TA+1}, 7, v1")
        a("s_cmp_eq_u32 s44, 7")
        a("s_cbranch_scc1 K1_TX")
        a("s_cmp_eq_u32 s44, 6")
        a("s_cbranch_scc1 K1_TQ")
        a(f"v_min_u32 v{TA+1}, 6, v{TA+1}")
        a(f"v_mul_u32_u24 v{TA}, {32*3584}, v{TA}")
        a(f"v_lshl_add_u32 v{TA}, v{TA+1}, 7, v{TA}")
        a("s_mul_i32 s52, s51, 3584")
        a("s_mul_i32 s54, s46, 896")
        a("s_add_u32 s52, s52, s54")
        a(f"s_add_u32 s54, s52, {256*3584}")
        a("s_waitcnt lgkmcnt(0)")
        srd(a, 32, 8, 0x1c0000)
        a("s_cmp_eq_u32 s44, 4")
        a("s_cbranch_scc1 K1_TG")
        a("s_mov_b32 s32, s10")
        a("s_mov_b32 s33, s11")
        a("s_branch K1_TG")
        a("K1_TQ:")
        a(f"v_min_u32 v{TA+1}, 5, v{TA+1}")
        a(f"v_add_u32 v{TA+1}, s49, v{TA+1}")
        a(f"v_add_u32 v{TD}, 13, v{TA+1}")
        a(f"v_add_u32 v{TD+1}, 1, v{TA+1}")
        a(f"v_cmp_gt_u32 vcc, 11, v{TA+1}")
        a(f"v_cndmask_b32 v{TD}, v{TD+1}, v{TD}, vcc")
        a("s_add_u32 s52, s49, 3")
        a(f"v_cmp_gt_u32 vcc, s52, v{TA+1}")
        a(f"v_cndmask_b32 v{TA+1}, v{TD}, v{TA+1}, vcc")
        a(f"v_mul_u32_u24 v{TA}, {32*3072}, v{TA}")
        a(f"v_lshl_add_u32 v{TA}, v{TA+1}, 7, v{TA}")
        a("s_mul_i32 s52, s51, 3072")
        a(f"s_add_u32 s54, s52, {256*3072}")
        a("s_waitcnt lgkmcnt(0)")
        srd(a, 32, 6, 0x180000)
        a("s_branch K1_TG")
        a("K1_TX:")
        a(f"v_and_b32 v{TA}, 31, v1")
        a(f"v_lshlrev_b32 v{TA}, 10, v{TA}")
        a(f"v_lshrrev_b32 v{TA+1}, 5, v1")
        a(f"v_lshl_add_u32 v{TA}, v{TA+1}, 7, v{TA}")
        a("s_and_b32 s52, s50, 1")
        a("s_lshl_b32 s52, s52, 20")
        a("s_lshl_b32 s54, s51, 15")
        a("s_add_u32 s52, s52, s54")
        a("s_add_u32 s54, s52, 768")
        a("s_add_u32 s52, s52, 512")
        a("s_waitcnt lgkmcnt(0)")
        srd(a, 32, 4, 0x200000)
        if OPT['tsl']: a(f"s_sleep {OPT['tsl']}")
        a(f"buffer_load_dword v{TD+2}, v{TA}, s[32:35], s52 offen{tm}")
        a("s_sub_u32 s52, s52, 256")
        a("K1_TG:")
        if OPT['tsl']: a(f"s_sleep {OPT['tsl']}")
        a(f"buffer_load_dword v{TD}, v{TA}, s[32:35], s52 offen{tm}")
        a(f"buffer_load_dword v{TD+1}, v{TA}, s[32:35], s54 offen{tm}")
    L16 = 2; L16B = 3; XA = 4; TR = 8; VVS = 14; T0 = 15
    F = [16, 44]; ACC = 72; T1 = 72; T2 = 73; HI = 74
    a("s_and_b32 s55, s44, 1")
    a("s_bfe_u32 s56, s44, 0x10001")
    a(f"v_lshrrev_b32 v{HI}, 5, v1")
    a(f"v_and_b32 v{T0}, 31, v1")
    a(f"v_bfe_u32 v{T1}, v{T0}, 1, 3")
    a(f"v_xor_b32 v{T1}, v{T1}, v{HI}")
    a(f"v_lshlrev_b32 v{T1}, 4, v{T1}")
    a(f"v_lshl_add_u32 v{T1}, v{T0}, 7, v{T1}")
    a("s_lshl_b32 s52, s55, 13")
    a(f"v_add_u32 v{XA}, s52, v{T1}")
    for q in range(1, 4): a(f"v_xor_b32 v{XA+q}, {32*q}, v{XA}")
    a(f"v_bfe_u32 v{T0}, v1, 2, 2")
    a(f"v_lshlrev_b32 v{T0}, 7, v{T0}")
    a(f"v_lshl_add_u32 v{T0}, v{HI}, 10, v{T0}")
    a(f"v_bfe_u32 v{T1}, v1, 3, 1")
    a(f"v_lshl_add_u32 v{T0}, v{T1}, 6, v{T0}")
    a(f"v_bfe_u32 v{T1}, v1, 4, 1")
    a(f"v_lshl_add_u32 v{T0}, v{T1}, 5, v{T0}")
    a(f"v_and_b32 v{T2}, 3, v1")
    a(f"v_lshl_add_u32 v{T0}, v{T2}, 3, v{T0}")
    a("s_lshl_b32 s52, s56, 12")
    a(f"s_add_u32 s52, s52, {WR}")
    a(f"v_add_u32 v{TR}, s52, v{T0}")
    a(f"v_xor_b32 v{TR+1}, 64, v{TR}")
    a("s_lshl_b32 s52, s56, 6")
    a(f"v_xor_b32 v{T0}, s52, v{T0}")
    a(f"v_add_u32 v{TR+2}, {WR + 16384}, v{T0}")
    for i in range(3): a(f"v_add_u32 v{TR+3+i}, {61440}, v{TR+i}")
    a(f"v_lshlrev_b32 v{L16}, 4, v1")
    a(f"v_add_u32 v{L16B}, 0x10000, v{L16}")
    a(f"v_lshlrev_b32 v{T1}, 16, v{T1}")
    a(f"v_lshl_add_u32 v{T1}, v{HI}, 8, v{T1}")
    a(f"v_and_b32 v{T2}, 15, v1")
    a(f"v_lshl_add_u32 v{VVS}, v{T2}, 4, v{T1}")
    a("s_lshl_b32 s57, s45, 2")
    a("s_lshl_b32 s52, s55, 1")
    a("s_add_u32 s57, s57, s52")
    a("s_add_u32 s52, s48, s56")
    a("s_cmp_eq_u32 s47, 3")
    a("s_cselect_b32 s52, s48, s52")
    a("s_lshl_b32 s52, s52, 12")
    a("s_mul_i32 s58, s57, 114688")
    a("s_add_u32 s58, s58, s52")
    a(f"s_add_u32 s58, s58, {hex(WS_HF)}")
    a("s_add_u32 s59, s58, 114688")
    a("s_lshl_b32 s57, s57, 10")
    a("s_lshl_b32 s52, s53, 1")
    a("s_add_u32 s52, s52, s56")
    a("s_lshl_b32 s52, s52, 17")
    a("s_add_u32 s60, s52, s57")
    a("s_mul_i32 s52, s46, 786432")
    a("s_add_u32 s61, s52, s57")
    a("s_add_u32 s62, s61, 0x20000")
    a("s_add_u32 s63, s61, 0x40000")
    a("s_add_u32 s64, s61, 0x60000")
    a(f"s_mov_b32 s52, {hex(QSCALE)}")
    a("s_cmp_lt_u32 s53, 8")
    a("s_cselect_b32 s66, s52, 1.0")
    a("s_cmp_lt_u32 s49, 8")
    a("s_cselect_b32 s68, s52, 1.0")
    a("s_cmp_lt_u32 s49, 7")
    a("s_cselect_b32 s70, s52, 1.0")
    a("s_mov_b32 s67, s66"); a("s_mov_b32 s69, s68"); a("s_mov_b32 s71, s70")
    stamp_init(a)
    a("s_waitcnt lgkmcnt(0)")
    stamp(a, 0)
    srd(a, 28, 14, WS_SIZE)
    a("s_cmp_ge_u32 s53, 16")
    a("s_cbranch_scc1 K1_CV")

    def reads(k):
        f = F[k % 2]; d = k // 2; ds = d % 5
        xo = XR + ((k // 4) % 3) * 16384
        wo = ds * 20480 + (k % 2) * 2048
        tb_ = TR
        if ds >= 3: wo -= 61440; tb_ = TR + 3
        out = []
        def x(t): out.append((f"ds_read_b128 {vr(f+4*t,4)}, v{XA + k%4} offset:{xo + t*4096}", ("x", k, t)))
        def w(i):
            r = tb_ + (i % 2 if i < 4 else 2); o = wo + (8192 if i in (2, 3) else 0)
            out.append((f"ds_read_b64_tr_b16 {vr(f+8+4*i,2)}, v{r} offset:{o}", None))
            out.append((f"ds_read_b64_tr_b16 {vr(f+10+4*i,2)}, v{r} offset:{o+512}", ("w", k, i)))
        x(0); w(0); x(1); w(1); w(2); w(3); w(4)
        return out
    def mfma(k, i, t, var):
        f = F[k % 2]; acc = vr(ACC + 16*(2*i + t), 16)
        X = vr(f + 4*t, 4); W = vr(f + 8 + 4*i, 4)
        A, B = (X, W) if (var == "V" and i == 4) else (W, X)
        return f"v_mfma_f32_32x32x16_bf16 {acc}, {A}, {B}, {'0' if k == 0 else acc}"
    def epi_T(i, t, sscale, soff):
        A = ACC + 16*(2*i + t); out = []
        for j in range(8): out.append(f"v_pk_mul_f32 {vr(A+2*j,2)}, {vr(A+2*j,2)}, {sr(sscale,2)}")
        for j in range(8): out.append(f"v_cvt_pk_bf16_f32 v{A+j}, v{A+2*j}, v{A+2*j+1}")
        out.append(f"buffer_store_dwordx4 {vr(A,4)}, v{L16}, s[28:31], s{soff} offen offset:{t*1024}{SC()}")
        out.append(f"buffer_store_dwordx4 {vr(A+4,4)}, v{L16B}, s[28:31], s{soff} offen offset:{t*1024}{SC()}")
        return out
    def epi_V(i, t, soff):
        A = ACC + 16*(2*i + t); out = []
        for j in range(8): out.append(f"v_cvt_pk_bf16_f32 v{A+j}, v{A+2*j}, v{A+2*j+1}")
        out.append(f"buffer_store_dwordx4 {vr(A,4)}, v{VVS}, s[28:31], s{soff} offen offset:{t*1024}{SC()}")
        out.append(f"buffer_store_dwordx4 {vr(A+4,4)}, v{VVS}, s[28:31], s{soff} offen offset:{t*1024+512}{SC()}")
        return out
    def epi_H(ct, t):
        A = ACC + 16*(2*ct + t); U = ACC + 16*(2*(ct+2) + t); out = []
        for j in range(8): out.append(f"v_pk_mul_f32 {vr(A+2*j,2)}, {vr(A+2*j,2)}, {vr(U+2*j,2)}")
        for j in range(8): out.append(f"v_cvt_pk_bf16_f32 v{A+j}, v{A+2*j}, v{A+2*j+1}")
        out.append(f"buffer_store_dwordx4 {vr(A,4)}, v{L16}, s[28:31], s{58+t} offen offset:{ct*2048}{SC()}")
        out.append(f"buffer_store_dwordx4 {vr(A+4,4)}, v{L16}, s[28:31], s{58+t} offen offset:{ct*2048+1024}{SC()}")
        return out
    def final(lg, var, kind):
        import copy
        lg = copy.deepcopy(lg)
        rd = reads(31)
        rd = [rd[0], rd[3], rd[10], rd[11], rd[1], rd[2], rd[6], rd[7], rd[4], rd[5], rd[8], rd[9]]
        seq = [(30,4,0), (30,4,1), (30,0,0), (30,2,0), (31,4,0), (31,4,1), (31,0,0), (31,2,0),
               (30,0,1), (30,2,1), (31,0,1), (31,2,1),
               (30,1,0), (30,3,0), (31,1,0), (31,3,0),
               (30,1,1), (30,3,1), (31,1,1), (31,3,1)]
        ez = (lambda t: epi_V(4, t, 60)) if var == "V" else (lambda t: epi_T(4, t, 66, 60))
        if kind == "H":
            eh = lambda ct, t: epi_H(ct, t)
        else:
            eh = lambda ct, t: epi_T(ct, t, 68, 61 + ct) + epi_T(ct + 2, t, 70, 63 + ct)
        q = [(6, ez(0)), (7, ez(1)), (9, eh(0, 0)), (13, eh(0, 1)), (17, eh(1, 0)), (99, eh(1, 1))]
        pend = []
        per = 6 if kind == "H" else 9
        for n, (k, i, t) in enumerate(seq):
            lg.wait(a, ("x", k, t), ("w", k, i))
            a(mfma(k, i, t, var))
            for _ in range(3):
                if rd:
                    s, tag = rd.pop(0); a(s); lg.issue(tag)
            while q and q[0][0] <= n: pend += q.pop(0)[1]
            for _ in range(per):
                if pend: a(pend.pop(0))
        for _, l in q: pend += l
        for s in pend: a(s)
        if STAMP:
            stamp(a, 6)
            a("s_waitcnt vmcnt(0)")
            stamp(a, 7)
            stamp_out(a, 0)
        a("s_endpgm")
    for var in "TV":
        if var == "V": a("K1_CV:")
        lg = LG()
        a("s_barrier")
        stamp(a, 1)
        for s, tag in reads(0): a(s); lg.issue(tag)
        for k in range(30):
            rd = reads(k + 1)
            n = 0
            for i in range(5):
                for t in range(2):
                    lg.wait(a, ("x", k, t), ("w", k, i))
                    if OPT['dbg'] == 3 and k > 0:
                        f_ = F[k % 2]
                        for q_ in range(2):
                            ac_ = vr(ACC + 16*(2*i + t) + 8*(k % 2) + 4*q_, 4)
                            tt_ = t if q_ == 0 else (1 - t if (i > 0 or t > 0) else t)
                            a(f"v_mfma_f32_16x16x32_bf16 {ac_}, {vr(f_ + 8 + 4*i, 4)}, {vr(f_ + 4*tt_, 4)}, {ac_}")
                            if q_ == 0 and (k % 2 == 0 or n >= 2) and rd:
                                s_, tag = rd.pop(0); a(s_); lg.issue(tag)
                    elif OPT['dbg'] != 2 or k == 0: a(mfma(k, i, t, var))
                    if k % 2 == 1 and n == 1:
                        lg.wait_all(a)
                        a("s_barrier")
                        if k in (7, 15, 23, 29) and STAMP:
                            stamp(a, {7: 2, 15: 3, 23: 4, 29: 5}[k])
                    if k % 2 == 0 or n >= 1:
                        for _ in range(1 if (OPT['dbg'] == 3 and k > 0) else 2):
                            if rd:
                                s, tag = rd.pop(0)
                                if OPT['dbg'] == 2 and k < 29: lg.tags[tag] = 1
                                else: a(s); lg.issue(tag)
                    n += 1
            assert not rd
        if var == "T":
            a("s_cmp_eq_u32 s47, 3")
            a("s_cselect_b32 s52, 0, 1")
            a("s_or_b32 s52, s52, s56")
            a("s_cmp_eq_u32 s52, 0")
            a("s_cbranch_scc1 K1_FQ")
            final(lg, "T", "H")
            a("K1_FQ:")
            final(lg, "T", "Q")
        else:
            final(lg, "V", "H")
    a("K1_END:")
    a("s_endpgm")
    return N, 240, (256, 512, 151552)

GRING = 131072; SYNC = GRING + 28672
O_AC = 0
O_GC = 8
O_MF = 16
VL = 1; VL16 = 2; VS = 3; VONE = 4; VHI = 5; VT = 6; VT2 = 7
AQ = [8, 12]; KA = [16, 17]; VA = [18, 19]; KW = 20; VVB = 21; AT0 = 22; AT1 = 23
AC = [24, 40]; AS = [56, 72]; AO = [88, 104]; AK = [120, 124]; AV = [128, 136]; AP = [144, 152]

def gen_k2(a):
    N = "k2_kernel"
    header(a, N)
    a("s_cmp_ge_u32 s2, 256")
    a("s_cbranch_scc1 K2_END")
    a("s_load_dwordx2 s[10:11], s[0:1], 80")
    a("s_load_dwordx2 s[16:17], s[0:1], 48")
    a("v_lshrrev_b32 v8, 6, v0")
    a(f"v_and_b32 v{VL}, 63, v0")
    a("v_readfirstlane_b32 s44, v8")
    a("s_and_b32 s50, s2, 7")
    a("s_lshr_b32 s51, s2, 3")
    a("s_lshl_b32 s47, s50, 2")
    a("s_and_b32 s52, s51, 3")
    a("s_add_u32 s47, s47, s52")
    a("s_lshr_b32 s48, s51, 2")
    a(f"v_lshlrev_b32 v{VL16}, 4, v{VL}")
    a(f"s_mov_b32 s3, {SPIN}")
    a("s_cmp_ge_u32 s44, 8")
    a("s_cbranch_scc1 K2_G")
    gen_attn(a)
    a("K2_G:")
    gen_down(a)
    a("K2_END:")
    a("s_endpgm")
    return N, 168, (256, 768, 163840)

def gen_attn(a):
    C = AC; S = AS; O = AO; KF_ = AK; VF_ = AV; P = AP; Q = AQ
    a("s_and_b32 s53, s44, 3")
    a("s_lshr_b32 s52, s44, 2")
    a("s_lshl_b32 s63, s53, 1")
    a("s_add_u32 s63, s63, s52")
    a("s_lshl_b32 s64, s48, 3")
    a("s_add_u32 s63, s63, s64")
    a("s_lshl_b32 s56, s47, 16")
    a("s_lshl_b32 s57, s63, 10")
    a("s_add_u32 s57, s57, s56")
    a("s_xor_b32 s58, s57, 1024")
    a("s_lshl_b32 s59, s52, 15")
    a("s_add_u32 s56, s56, s59")
    a(f"s_add_u32 s56, s56, {hex(WS_KF)}")
    a("s_lshl_b32 s59, s53, 10")
    a("s_add_u32 s62, s56, s59")
    a("s_add_u32 s61, s62, 0x200000")
    a("s_lshl_b32 s66, s52, 13")
    a("s_add_u32 s60, s66, s59")
    a("s_mov_b32 m0, s60")
    a(f"v_mov_b32 v{VS}, {SYNC}")
    a(f"v_mov_b32 v{VT}, 0")
    a(f"v_lshl_add_u32 v{VT2}, v{VL}, 2, v{VS}")
    a(f"ds_write_b32 v{VT2}, v{VT}")
    stamp_init(a)
    a("s_waitcnt lgkmcnt(0)")
    stamp(a, 0)
    srd(a, 28, 10, WS_SIZE)
    vm = VM()
    T0 = S[1]
    a(f"buffer_load_dwordx4 {vr(T0,4)}, v{VL16}, s[28:31], s62 offen"); vm.issue()
    a(f"buffer_load_dwordx4 {vr(Q[0],4)}, v{VL16}, s[28:31], s57 offen"); vm.issue()
    a(f"buffer_load_dwordx4 {vr(Q[1],4)}, v{VL16}, s[28:31], s58 offen"); vm.issue("q")
    def kvdma(s):
        a(f"buffer_load_dwordx4 v{VL16}, s[28:31], s62 offen lds"); vm.issue()
        a(f"s_add_u32 m0, m0, 4096")
        a("s_add_u32 s62, s62, 4096")
        a(f"buffer_load_dwordx4 v{VL16}, s[28:31], s61 offen lds"); vm.issue(("st", s))
        if s < 7:
            a(f"s_add_u32 m0, m0, 12288")
            a("s_add_u32 s61, s61, 4096")
    kvdma(0); kvdma(1)
    a("s_barrier")
    stamp(a, 1)
    a(f"v_mov_b32 v{VONE}, 1")
    a(f"v_lshrrev_b32 v{VHI}, 5, v{VL}")
    a(f"v_and_b32 v{VT}, 27, v{VL}")
    a(f"v_mov_b32 v{VT2}, 0x3f803f80")
    a(f"v_cmp_eq_u32 vcc, 16, v{VT}")
    a(f"v_cndmask_b32 v{VT2}, 0, v{VT2}, vcc")
    for i in range(16): a(f"v_mov_b32 v{VF_[0]+i}, v{VT2}")
    a(f"v_add_u32 v{KA[0]}, s66, v{VL16}")
    a(f"v_add_u32 v{KA[1]}, 0x10000, v{KA[0]}")
    a(f"v_and_b32 v{VT}, 15, v{VL}")
    a(f"v_lshlrev_b32 v{VT}, 4, v{VT}")
    a(f"v_lshl_add_u32 v{VVB}, v{VHI}, 8, v{VT}")
    a("s_add_u32 s67, s66, 4096")
    a(f"v_add_u32 v{VA[0]}, s67, v{VVB}")
    a(f"v_add_u32 v{VA[1]}, 0x10000, v{VA[0]}")
    a("s_mov_b32 s68, 0x0000ffff")
    a("s_mov_b32 s69, 0x0000ffff")
    a("s_lshl_b32 s66, s52, 2")
    a(f"v_add_u32 v0, s66, v{VS}")
    a("s_lshl_b32 s64, s63, 15")
    a("s_lshl_b32 s65, s47, 10")
    a("s_add_u32 s64, s64, s65")
    a(f"s_add_u32 s64, s64, {hex(WS_OF)}")
    vm.wait(a, "q")
    stamp(a, 2)
    if OPT['qs']:
        a(f"s_mov_b32 s70, {hex(QSCALE)}")
        for i in range(8):
            r = Q[0] + i; t = C[0] + 2*i
            a(f"v_lshlrev_b32 v{t}, 16, v{r}")
            a(f"v_and_b32 v{t+1}, 0xffff0000, v{r}")
            a(f"v_mul_f32 v{t}, s70, v{t}")
            a(f"v_mul_f32 v{t+1}, s70, v{t+1}")
            a(f"v_cvt_pk_bf16_f32 v{r}, v{t}, v{t+1}")
    a(f"v_mfma_f32_32x32x16_bf16 {vr(C[0],16)}, {vr(T0,4)}, {vr(Q[0],4)}, 0")
    a(f"v_mfma_f32_32x32x16_bf16 {vr(C[1],16)}, {vr(T0,4)}, {vr(Q[1],4)}, 0")
    for h in range(2):
        m = AT0 + h
        a(f"v_max3_f32 v{m}, v{C[h]}, v{C[h]+1}, v{C[h]+2}")
        for i in range(3, 15, 2):
            a(f"v_max3_f32 v{m}, v{m}, v{C[h]+i}, v{C[h]+i+1}")
        a(f"v_max_f32 v{m}, v{m}, v{C[h]+15}")
        a(f"v_mov_b32 v{VT}, v{m}")
        a(f"v_permlane32_swap_b32 v{m}, v{VT}")
        a(f"v_max_f32 v{m}, v{m}, v{VT}")
        for i in range(16): a(f"v_mul_f32 v{C[h]+i}, -1.0, v{m}")
    vm.wait(a, ("st", 0))
    lds_arrive(a, O_AC, 0, VONE)
    lds_wait(a, O_AC, "4", 0, AT0, sleep=0)
    stamp(a, 3)
    if OPT['yp']:
        a("s_cmp_eq_u32 s52, 0")
        a("s_cbranch_scc1 A_OLD")
        a("s_setprio 1")
        a("A_OLD:")
    def rdK(t):
        a(f"ds_read_b128 {vr(KF_[t%2],4)}, v{KA[t//16]} offset:{((t//4)%4)*16384 + (t%4)*1024}")
    def rdV(t):
        o = ((t//4)%4)*16384 + (t%4)*1024
        a("s_mov_b64 exec, s[68:69]")
        a(f"ds_read_b128 {vr(VF_[t%2],4)}, v{VA[t//16]} offset:{o}")
        a(f"ds_read_b128 {vr(VF_[t%2]+4,4)}, v{VA[t//16]} offset:{o+512}")
        a("s_mov_b64 exec, -1")
    def mS(u):
        t, h = u // 2, u % 2
        a(f"v_mfma_f32_32x32x16_bf16 {vr(S[h],16)}, {vr(KF_[t%2],4)}, {vr(Q[h],4)}, {vr(C[h],16)}")
    def mPV(u, j, first=False):
        t, h = u // 2, u % 2
        a(f"v_mfma_f32_32x32x16_bf16 {vr(O[h],16)}, {vr(VF_[t%2]+4*j,4)}, {vr(P[h]+4*j,4)}, {'0' if first else vr(O[h],16)}")
    def ex(u, i): a(f"v_exp_f32 v{S[u%2]+i}, v{S[u%2]+i}")
    def cv(u, i): a(f"v_cvt_pk_bf16_f32 v{P[u%2]+i}, v{S[u%2]+2*i}, v{S[u%2]+2*i+1}")
    rdK(0); rdV(0)
    a("s_waitcnt lgkmcnt(2)")
    mS(0)
    SY = {0: (1, 8), 1: (3, 12), 3: (7, 16)}
    slow = []
    for u in range(64):
        t, h = u // 2, u % 2
        s, uu = u // 8, u % 8
        ex(u, 0); ex(u, 1)
        if u > 0: mPV(u - 1, 1)
        ex(u, 2); ex(u, 3); ex(u, 4)
        if h == 1: a("s_waitcnt lgkmcnt(0)")
        if u < 63: mS(u + 1)
        if h == 0 and t < 31:
            rdK(t + 1); rdV(t + 1)
        if u < 6: kvdma(u + 2)
        if s in SY:
            if uu == 1:
                vm.wait(a, ("st", SY[s][0]))
                lds_arrive(a, O_AC, 0, VONE)
            if uu == 4:
                a(f"ds_read_b32 v{AT0}, v0 offset:{O_AC}")
            if uu == 5:
                a(f"v_readfirstlane_b32 s70, v{AT0}")
                a(f"s_cmp_ge_u32 s70, {SY[s][1]}")
                a(f"s_cbranch_scc0 A_SLOW{s}")
                a(f"A_OK{s}:")
                slow.append(s)
        if s == 6 and uu == 1:
            lds_arrive(a, O_AC, 0, VONE)
        if OPT['yp'] and u == OPT['yp']: a("s_setprio 0")
        if u in (16, 32, 48): stamp(a, 3 + u // 16)
        ex(u, 5); ex(u, 6); ex(u, 7); ex(u, 8)
        for i in range(4): cv(u, i)
        ex(u, 9); ex(u, 10); ex(u, 11)
        if u == 0: a("s_waitcnt lgkmcnt(3)")
        mPV(u, 0, first=(u < 2))
        for i in range(12, 16): ex(u, i)
        for i in range(4, 8): cv(u, i)
    a(f"ds_read_b32 v{AT0}, v0 offset:{O_AC}")
    mPV(63, 1)
    a("s_setprio 1")
    stamp(a, 7)
    a("s_lshr_b32 s66, s53, 1")
    a("s_lshl_b32 s66, s66, 14")
    a("s_and_b32 s67, s53, 1")
    a("s_lshl_b32 s67, s67, 12")
    a("s_add_u32 s66, s66, s67")
    a("s_lshl_b32 s67, s52, 13")
    a("s_add_u32 s66, s66, s67")
    a("s_add_u32 s66, s66, 49152")
    a(f"v_add_u32 v{KW}, s66, v{VL16}")
    a("s_lshl_b32 s66, s44, 2")
    a(f"v_add_u32 v{KA[0]}, s66, v{VS}")
    a("s_waitcnt lgkmcnt(0)")
    a(f"v_readfirstlane_b32 s70, v{AT0}")
    a("s_cmp_ge_u32 s70, 20")
    a("s_cbranch_scc0 A_SLOW9")
    a("A_OK9:")
    a("s_mov_b32 s70, 0x4f800000")
    a(f"v_cmp_gt_f32 vcc, s70, v{O[0]+8}")
    a(f"v_cmp_gt_f32 s[66:67], s70, v{O[1]+8}")
    a("s_and_b64 vcc, vcc, s[66:67]")
    a("s_cmp_eq_u64 vcc, -1")
    a("s_cbranch_scc0 A_FALL")
    a("A_FIN:")
    a(f"v_mov_b32 v{O[1]+9}, v{C[1]}")
    a(f"ds_write_b128 v{KW}, {vr(O[1],4)}")
    a(f"ds_write_b128 v{KW}, {vr(O[1]+4,4)} offset:1024")
    a(f"ds_write_b64 v{KW}, {vr(O[1]+8,2)} offset:2048")
    a("s_mov_b64 exec, 1")
    a(f"ds_write_b32 v{KA[0]}, v{VONE} offset:{O_MF}")
    a("s_mov_b64 exec, -1")
    a(f"v_xor_b32 v{KA[0]}, 16, v{KA[0]}")
    a(f"v_xor_b32 v{KW}, 0x2000, v{KW}")
    lds_wait(a, O_MF, "1", KA[0], VT, sleep=0)
    R = S[0]
    a(f"ds_read_b64 {vr(R+8,2)}, v{KW} offset:2048")
    a(f"ds_read_b128 {vr(R,4)}, v{KW}")
    a(f"ds_read_b128 {vr(R+4,4)}, v{KW} offset:1024")
    a("s_waitcnt lgkmcnt(2)")
    a(f"v_min_f32 v{AT0}, v{C[0]}, v{R+9}")
    a(f"v_sub_f32 v{AT1}, v{AT0}, v{R+9}")
    a(f"v_sub_f32 v{AT0}, v{AT0}, v{C[0]}")
    a(f"v_exp_f32 v{AT0}, v{AT0}")
    a(f"v_exp_f32 v{AT1}, v{AT1}")
    a(f"v_mul_f32 v{VT}, v{AT0}, v{O[0]+8}")
    a(f"v_fma_f32 v{VT}, v{AT1}, v{R+8}, v{VT}")
    a(f"v_rcp_f32 v{VT}, v{VT}")
    a(f"v_mul_f32 v{AT0}, v{AT0}, v{VT}")
    a(f"v_mul_f32 v{AT1}, v{AT1}, v{VT}")
    for i in range(8): a(f"v_mul_f32 v{O[0]+i}, v{AT0}, v{O[0]+i}")
    a("s_waitcnt lgkmcnt(0)")
    for i in range(8): a(f"v_fma_f32 v{O[0]+i}, v{AT1}, v{R+i}, v{O[0]+i}")
    for i in range(4): a(f"v_cvt_pk_bf16_f32 v{P[0]+i}, v{O[0]+2*i}, v{O[0]+2*i+1}")
    a(f"buffer_store_dwordx4 {vr(P[0],4)}, v{VL16}, s[28:31], s64 offen{SC()}")
    if STAMP:
        stamp(a, 8)
        a("s_waitcnt vmcnt(0)")
        stamp(a, 9)
        stamp_out(a, 1)
    a("s_endpgm")
    for s in slow + [9]:
        a(f"A_SLOW{s}:")
        lds_wait(a, O_AC, str(SY[s][1] if s in SY else 20), 0, AT0, sleep=1)
        a(f"s_branch A_OK{s}")
    a("A_FALL:")
    a("s_mov_b32 s62, s56")
    a("s_mov_b32 s54, 0")
    a(f"v_mov_b32 v{AT0}, 0xff800000")
    a(f"v_mov_b32 v{AT1}, 0xff800000")
    a("A_MAXL:")
    a(f"buffer_load_dwordx4 {vr(KF_[0],4)}, v{VL16}, s[28:31], s62 offen")
    a("s_waitcnt vmcnt(0)")
    for h in range(2):
        a(f"v_mfma_f32_32x32x16_bf16 {vr(S[h],16)}, {vr(KF_[0],4)}, {vr(Q[h],4)}, 0")
    a("s_add_u32 s62, s62, 1024")
    for h in range(2):
        for i in range(8):
            a(f"v_max3_f32 v{AT0+h}, v{S[h]+2*i}, v{S[h]+2*i+1}, v{AT0+h}")
    a("s_add_u32 s54, s54, 1")
    a("s_cmp_lt_u32 s54, 32")
    a("s_cbranch_scc1 A_MAXL")
    for h in range(2):
        m = AT0 + h
        a(f"v_mov_b32 v{VT}, v{m}")
        a(f"v_permlane32_swap_b32 v{m}, v{VT}")
        a(f"v_max_f32 v{m}, v{m}, v{VT}")
        for i in range(16): a(f"v_mul_f32 v{C[h]+i}, -1.0, v{m}")
    for i in range(32): a(f"v_mov_b32 v{O[0]+i}, 0")
    a("s_mov_b32 s62, s56")
    a("s_add_u32 s63, s56, 0x200000")
    a("s_mov_b32 s54, 0")
    a("A_FBL:")
    a(f"buffer_load_dwordx4 {vr(KF_[0],4)}, v{VL16}, s[28:31], s62 offen")
    a("s_mov_b64 exec, s[68:69]")
    a(f"buffer_load_dwordx4 {vr(VF_[0],4)}, v{VVB}, s[28:31], s63 offen")
    a(f"buffer_load_dwordx4 {vr(VF_[0]+4,4)}, v{VVB}, s[28:31], s63 offen offset:512")
    a("s_mov_b64 exec, -1")
    a("s_waitcnt vmcnt(0)")
    mS(0); mS(1)
    a("s_add_u32 s62, s62, 1024")
    a("s_add_u32 s63, s63, 1024")
    for u in range(2):
        for i in range(16): ex(u, i)
        for i in range(8): cv(u, i)
        mPV(u, 0); mPV(u, 1)
    a("s_nop 7"); a("s_nop 7")
    a("s_add_u32 s54, s54, 1")
    a("s_cmp_lt_u32 s54, 32")
    a("s_cbranch_scc1 A_FBL")
    a("s_branch A_FIN")

def gen_down(a):
    D0 = 8; GV = 9; TR0 = 10; TR1 = 11
    WF = [32, 40]; BR = 48; ACC = 104
    a("s_and_b32 s56, s44, 3")
    a(f"v_lshrrev_b32 v20, 3, v{VL}")
    a(f"v_bfe_u32 v21, v{VL}, 4, 1")
    a("v_lshlrev_b32 v21, 2, v21")
    a(f"v_and_b32 v22, 7, v{VL}")
    a("v_xor_b32 v21, v21, v22")
    a("v_lshlrev_b32 v20, 10, v20")
    a(f"v_lshl_add_u32 v{D0}, v21, 4, v20")
    a("s_lshl_b32 s59, s48, 7")
    a("s_mul_i32 s62, s56, 458752")
    a("s_add_u32 s62, s62, s59")
    a("s_lshl_b32 s67, s56, 10")
    a(f"s_add_u32 s67, s67, {GRING}")
    a("s_mul_i32 s64, s47, 229376")
    a("s_mul_i32 s65, s56, 28672")
    a("s_add_u32 s64, s64, s65")
    a(f"s_add_u32 s64, s64, {hex(WS_HF)}")
    a("s_add_u32 s65, s64, 114688")
    stamp_init(a)
    a("s_waitcnt lgkmcnt(0)")
    stamp(a, 0)
    srd(a, 24, 16, 0x1c0000)
    srd(a, 28, 10, WS_SIZE)
    vm = VM(); lg = LG()
    def wdma(u):
        a(f"s_add_u32 m0, s67, {(u % 7)*4096}")
        a(f"buffer_load_dwordx4 v{D0}, s[24:27], s62 offen lds"); vm.issue(("u", u))
        a("s_add_u32 s62, s62, 8192")
    def bload(s):
        sl = s % 7
        a(f"buffer_load_dwordx4 {vr(BR+8*sl,4)}, v{VL16}, s[28:31], s64 offen offset:{(s%4)*1024}"); vm.issue()
        a(f"buffer_load_dwordx4 {vr(BR+8*sl+4,4)}, v{VL16}, s[28:31], s65 offen offset:{(s%4)*1024}"); vm.issue(("b", s))
        if s % 4 == 3:
            a("s_add_u32 s64, s64, 4096")
            a("s_add_u32 s65, s65, 4096")
    def rd(s):
        w = WF[s % 2]
        u0 = (2*s) % 7; u1 = (2*s + 1) % 7
        for ct, tr in ((0, TR0), (1, TR1)):
            a(f"ds_read_b64_tr_b16 {vr(w+4*ct,2)}, v{tr} offset:{u0*4096}"); lg.issue()
            a(f"ds_read_b64_tr_b16 {vr(w+4*ct+2,2)}, v{tr} offset:{u1*4096}"); lg.issue(("w", s))
    a("s_barrier")
    wdma(0); wdma(1); bload(0); wdma(2); wdma(3); bload(1); wdma(4); wdma(5); bload(2); wdma(6)
    for s in range(3, 6): bload(s)
    stamp(a, 1)
    a(f"v_mov_b32 v{VS}, {SYNC}")
    a(f"v_mov_b32 v{VONE}, 1")
    a(f"v_lshrrev_b32 v{VHI}, 5, v{VL}")
    a(f"v_bfe_u32 v20, v{VL}, 2, 2")
    a(f"v_lshl_add_u32 v20, v{VHI}, 2, v20")
    a("v_lshlrev_b32 v20, 7, v20")
    a(f"v_bfe_u32 v21, v{VL}, 3, 1")
    a("v_lshl_add_u32 v20, v21, 6, v20")
    a(f"v_bfe_u32 v21, v{VL}, 4, 1")
    a("v_lshl_add_u32 v20, v21, 5, v20")
    a(f"v_and_b32 v21, 3, v{VL}")
    a("v_lshl_add_u32 v12, v21, 3, v20")
    a(f"v_add_u32 v{TR0}, s67, v12")
    a(f"v_xor_b32 v{TR1}, 64, v{TR0}")
    a("s_and_b32 s57, s56, 1")
    a("s_lshl_b32 s58, s47, 1")
    a("s_add_u32 s57, s57, s58")
    a("s_lshl_b32 s57, s57, 7")
    a(f"s_add_u32 s57, s57, {hex(WS_G)}")
    a(f"v_and_b32 v20, 31, v{VL}")
    a("v_lshlrev_b32 v13, 2, v20")
    a("s_lshl_b32 s58, s47, 3")
    a("s_add_u32 s58, s58, s48")
    a("s_lshl_b32 s58, s58, 13")
    a("s_lshl_b32 s60, s56, 11")
    a("s_add_u32 s58, s58, s60")
    a(f"s_add_u32 s58, s58, {hex(WS_BP)}")
    if OPT['gprio']: a(f"s_setprio {OPT['gprio']}")
    stamp(a, 2)
    vm.wait(a, ("u", 1))
    rd(0)
    for s in range(28):
        if s + 1 < 28:
            vm.wait(a, ("u", 2*s + 3))
            rd(s + 1)
        lg.wait(a, ("w", s))
        for u in (2*s + 7, 2*s + 8):
            if u < 56: wdma(u)
        vm.wait(a, ("b", s))
        w = WF[s % 2]; sl = s % 7
        for ct in range(2):
            for tt in range(2):
                acc = vr(ACC + 16 * (2*ct + tt), 16)
                a(f"v_mfma_f32_32x32x16_bf16 {acc}, {vr(w+4*ct,4)}, {vr(BR+8*sl+4*tt,4)}, {'0' if s == 0 else acc}")
        if s + 6 < 28: bload(s + 6)
        if s == 22:
            a(f"buffer_load_dword v{GV}, v13, s[28:31], s57 offen"); vm.issue("g")
        if s == 13: stamp(a, 3)
    stamp(a, 4)
    L = uid("GW"); D = uid("GD")
    a(f"{L}:")
    a(f"ds_read_b64 v[20:21], v{VS} offset:{O_AC}")
    a("s_waitcnt lgkmcnt(0)")
    a("v_min_u32 v20, v20, v21")
    a("v_readfirstlane_b32 s70, v20")
    a("s_cmp_ge_u32 s70, 16")
    a(f"s_cbranch_scc1 {D}")
    budget(a, 1, D)
    a("s_sleep 8")
    a(f"s_branch {L}")
    a(f"{D}:")
    stamp(a, 5)
    XB = 0
    for q in range(4):
        sk = uid("XS")
        a(f"s_cmp_eq_u32 s56, {q}")
        a(f"s_cbranch_scc1 {sk}")
        a(f"s_sub_u32 s66, s56, {q+1}")
        a("s_and_b32 s66, s66, 3")
        a("s_lshl_b32 s66, s66, 12")
        a(f"s_add_u32 s66, s66, {XB + q*12288}")
        a(f"v_add_u32 v13, s66, v{VL16}")
        for i in range(4):
            a(f"ds_write_b128 v13, {vr(ACC+16*q+4*i,4)} offset:{i*1024}")
        a(f"s_branch {sk}_e")
        a(f"{sk}:")
        for i in range(16): a(f"v_mov_b32 v{16+i}, v{ACC+16*q+i}")
        a(f"{sk}_e:")
    lds_arrive(a, O_GC, VS, VONE)
    lds_wait(a, O_GC, "4", VS, VT, sleep=1)
    BP = 16
    a("s_mul_i32 s66, s56, 12288")
    a(f"v_add_u32 v13, s66, v{VL16}")
    for t in range(3):
        for i in range(4):
            a(f"ds_read_b128 {vr(ACC+16*t+4*i,4)}, v13 offset:{XB + t*4096 + i*1024}")
    a("s_waitcnt vmcnt(0)")
    a(f"v_sub_f32 v10, 1.0, v{GV}")
    a("v_cvt_pk_bf16_f32 v10, v10, v10")
    a("v_and_b32 v10, 0xffff0000, v10")
    a("s_waitcnt lgkmcnt(0)")
    for i in range(16):
        a(f"v_add_f32 v{ACC+i}, v{ACC+i}, v{ACC+16+i}")
        a(f"v_add_f32 v{BP+i}, v{BP+i}, v{ACC+32+i}")
    for i in range(16):
        a(f"v_add_f32 v{BP+i}, v{BP+i}, v{ACC+i}")
    for i in range(16):
        a(f"v_mul_f32 v{BP+i}, v10, v{BP+i}")
    for i in range(8):
        a(f"v_cvt_pk_bf16_f32 v{BP+i}, v{BP+2*i}, v{BP+2*i+1}")
    a(f"buffer_store_dwordx4 {vr(BP,4)}, v{VL16}, s[28:31], s58 offen{SC()}")
    a(f"buffer_store_dwordx4 {vr(BP+4,4)}, v{VL16}, s[28:31], s58 offen offset:1024{SC()}")
    if STAMP:
        stamp(a, 8)
        a("s_waitcnt vmcnt(0)")
        stamp(a, 9)
        stamp_out(a, 1)

def gen_k3(a):
    N = "k3_kernel"
    header(a, N)
    a("s_cmp_ge_u32 s2, 256")
    a("s_cbranch_scc1 K3_END")
    a("s_load_dwordx2 s[10:11], s[0:1], 80")
    a("s_load_dwordx2 s[8:9], s[0:1], 16")
    a("s_load_dwordx2 s[20:21], s[0:1], 64")
    a("v_lshrrev_b32 v8, 6, v0")
    a(f"v_and_b32 v{VL}, 63, v0")
    a("v_readfirstlane_b32 s44, v8")
    a("s_and_b32 s50, s2, 7")
    a("s_lshr_b32 s51, s2, 3")
    a("s_lshl_b32 s47, s50, 2")
    a("s_and_b32 s52, s51, 3")
    a("s_add_u32 s47, s47, s52")
    a("s_lshr_b32 s48, s51, 2")
    a(f"v_lshlrev_b32 v{VL16}, 4, v{VL}")
    D0 = 8
    a(f"v_lshrrev_b32 v20, 3, v{VL}")
    a(f"v_bfe_u32 v21, v{VL}, 4, 1")
    a("v_lshlrev_b32 v21, 2, v21")
    a(f"v_and_b32 v22, 7, v{VL}")
    a("v_xor_b32 v21, v21, v22")
    a("v_lshlrev_b32 v20, 10, v20")
    a(f"v_lshl_add_u32 v{D0}, v21, 4, v20")
    a("s_lshl_b32 s52, s44, 13")
    a("s_lshl_b32 s53, s47, 16")
    a("s_add_u32 s53, s53, s52")
    a(f"s_add_u32 s53, s53, {hex(WS_OF)}")
    a("s_lshr_b32 s54, s44, 1")
    a("s_lshl_b32 s54, s54, 4")
    a("s_and_b32 s55, s44, 1")
    a("s_add_u32 s54, s54, s55")
    a("s_lshl_b32 s55, s54, 10")
    a("s_add_u32 s55, s55, 65536")
    a("s_lshl_b32 s54, s54, 13")
    a("s_lshl_b32 s59, s48, 7")
    a("s_add_u32 s54, s54, s59")
    a("s_mov_b32 m0, s52")
    stamp_init(a)
    a("s_waitcnt lgkmcnt(0)")
    stamp(a, 0)
    srd(a, 28, 10, WS_SIZE)
    srd(a, 32, 8, 0x80000)
    vm = VM()
    for s in range(8):
        if s > 0: a(f"s_add_u32 m0, s52, {(s//4)*4096}")
        a(f"buffer_load_dwordx4 v{VL16}, s[28:31], s53 offen offset:{(s%4)*1024} lds"); vm.issue()
        a(f"s_add_u32 m0, s55, {s*2048}")
        a(f"buffer_load_dwordx4 v{D0}, s[32:35], s54 offen lds"); vm.issue(("st", s))
        if s < 7: a("s_add_u32 s54, s54, 16384")
        if s == 3: a("s_add_u32 s53, s53, 4096")
    stamp(a, 1)
    a("s_cmp_ge_u32 s44, 4")
    a("s_cbranch_scc1 K3_COMP")
    import copy
    vm2 = copy.deepcopy(vm)
    for s in range(8):
        vm2.wait(a, ("st", s))
        a("s_barrier")
    if STAMP:
        stamp(a, 2)
        stamp_out(a, 2)
    a("s_endpgm")
    a("K3_COMP:")
    BPR = 24; GV = 9; OA = 10; TR = 11; OUTA = 14; BF = 32; ACC = 48; FR = [64, 96]
    a("s_and_b32 s56, s44, 3")
    a("s_and_b32 s57, s56, 1")
    a("s_lshr_b32 s58, s56, 1")
    a("s_lshl_b32 s60, s47, 3")
    a("s_add_u32 s60, s60, s48")
    a("s_lshl_b32 s60, s60, 13")
    a("s_lshl_b32 s61, s56, 11")
    a("s_add_u32 s60, s60, s61")
    a(f"s_add_u32 s60, s60, {hex(WS_BP)}")
    a(f"buffer_load_dwordx4 {vr(BPR,4)}, v{VL16}, s[28:31], s60 offen"); vm.issue()
    a(f"buffer_load_dwordx4 {vr(BPR+4,4)}, v{VL16}, s[28:31], s60 offen offset:1024"); vm.issue()
    a("s_lshl_b32 s61, s47, 1")
    a("s_add_u32 s61, s61, s57")
    a("s_lshl_b32 s62, s61, 7")
    a(f"s_add_u32 s62, s62, {hex(WS_G)}")
    a(f"v_and_b32 v20, 31, v{VL}")
    a("v_lshlrev_b32 v13, 2, v20")
    a(f"buffer_load_dword v{GV}, v13, s[28:31], s62 offen"); vm.issue("g")
    srd(a, 36, 20, 0x200000)
    a(f"v_lshrrev_b32 v{VHI}, 5, v{VL}")
    a(f"v_lshlrev_b32 v{OUTA}, 10, v20")
    a(f"v_lshl_add_u32 v{OUTA}, v{VHI}, 4, v{OUTA}")
    a("s_lshl_b32 s63, s61, 15")
    a("s_add_u32 s63, s63, s59")
    a("s_lshl_b32 s64, s58, 6")
    a("s_add_u32 s63, s63, s64")
    a("s_lshl_b32 s65, s57, 15")
    a(f"v_add_u32 v{OA}, s65, v{VL16}")
    a(f"v_bfe_u32 v12, v{VL}, 2, 2")
    a(f"v_lshl_add_u32 v12, v{VHI}, 2, v12")
    a("v_lshlrev_b32 v12, 7, v12")
    a(f"v_bfe_u32 v15, v{VL}, 3, 1")
    a("v_lshl_add_u32 v12, v15, 6, v12")
    a(f"v_bfe_u32 v15, v{VL}, 4, 1")
    a("v_lshl_add_u32 v12, v15, 5, v12")
    a(f"v_and_b32 v15, 3, v{VL}")
    a("v_lshl_add_u32 v12, v15, 3, v12")
    a("v_xor_b32 v12, s64, v12")
    a(f"v_add_u32 v{TR}, 0x10000, v12")
    lg = LG()
    def rd(s):
        f = FR[s % 2]
        for j in range(4):
            hd = 8*j + s
            a(f"ds_read_b128 {vr(f+8*j,4)}, v{OA} offset:{hd*1024}"); lg.issue()
            a(f"ds_read_b64_tr_b16 {vr(f+8*j+4,2)}, v{TR} offset:{hd*2048}"); lg.issue()
            a(f"ds_read_b64_tr_b16 {vr(f+8*j+6,2)}, v{TR} offset:{hd*2048+1024}"); lg.issue(("f", s, j))
    def mm(s):
        f = FR[s % 2]
        for j in range(4):
            lg.wait(a, ("f", s, j))
            a(f"v_mfma_f32_32x32x16_bf16 {vr(ACC,16)}, {vr(f+8*j+4,4)}, {vr(f+8*j,4)}, {'0' if (s == 0 and j == 0) else vr(ACC,16)}")
    for s in range(8):
        vm.wait(a, ("st", s))
        a("s_barrier")
        if s == 0: stamp(a, 2)
        if s == 7: stamp(a, 3)
        rd(s)
        if s > 0: mm(s - 1)
    vm.wait(a, "g")
    for i in range(8):
        a(f"v_lshlrev_b32 v{BF+2*i}, 16, v{BPR+i}")
        a(f"v_and_b32 v{BF+2*i+1}, 0xffff0000, v{BPR+i}")
    mm(7)
    for i in range(16):
        a(f"v_fma_f32 v{BF+i}, v{GV}, v{ACC+i}, v{BF+i}")
    for i in range(8):
        a(f"v_cvt_pk_bf16_f32 v{BPR+i}, v{BF+2*i}, v{BF+2*i+1}")
    for b in (0, 4):
        a(f"v_permlane32_swap_b32 v{BPR+b}, v{BPR+b+2}")
        a(f"v_permlane32_swap_b32 v{BPR+b+1}, v{BPR+b+3}")
    a(f"buffer_store_dwordx4 {vr(BPR,4)}, v{OUTA}, s[36:39], s63 offen")
    a(f"buffer_store_dwordx4 {vr(BPR+4,4)}, v{OUTA}, s[36:39], s63 offen offset:32")
    if STAMP:
        stamp(a, 4)
        a("s_waitcnt vmcnt(0)")
        stamp(a, 5)
        stamp_out(a, 2)
    a("K3_END:")
    a("s_endpgm")
    return N, 128, (256, 512, 131072)

def build(path):
    a = Asm()
    ks = [gen_k1(a), gen_k2(a), gen_k3(a)]
    out = []
    for (n, v, (g, b, l)) in ks:
        out.append(f"; @launch kernel={n} grid=({g},1,1) block=({b},1,1) lds={l}")
    out.append('.amdgcn_target "amdgcn-amd-amdhsa--gfx950"')
    out.append(".text")
    out.append(a.text())
    out.append('.section .rodata,"a"')
    for (n, v, _) in ks:
        out.append(kd(n, v))
    open(path, "w").write("\n".join(out))

if __name__ == "__main__":
    path = sys.argv[1]
    args = sys.argv[2:]
    STAMP = "stamp" in args
    for x in args:
        if "=" in x:
            k, v = x.split("="); OPT[k] = int(v)
    build(path)
```

```python
import sys, copy
from asmlib import *
import gen4
from gen4 import (srd, header, kd, stamp, stamp_init, stamp_out, uid, Cnt, LG, VM, budget, lds_wait, lds_arrive,
                  WS_QF, WS_KF, WS_VF, WS_OF, WS_BP, WS_HF, WS_G, WS_ST, WS_SIZE, QSCALE, SPIN, OPT, SC)
OPT.update(dict(ta0=-1, ta1=-1, ta2=0, ta3=2, tb=4, tsl=0, epv=7, pro=2, sw=1, lateq=0, stn=0, spc=9))

XB = 98304
def WB(n, u): return (n % 4)*16384 + u*8192 if u < 2 else 65536 + (n % 4)*8192
XCH = [0, 1, 2, 3, 4, 5, 6, 7, 7, 6, 5, 4, 3, 2, 1, 0]

def gen_p1(a):
    N = "k1_kernel"
    header(a, N)
    a("s_cmp_ge_u32 s2, 256")
    a("s_cbranch_scc1 K1_END")
    a("s_load_dwordx4 s[4:7], s[0:1], 0")
    a("s_load_dwordx4 s[8:11], s[0:1], 32")
    a("s_load_dwordx2 s[14:15], s[0:1], 80")
    a("s_load_dwordx2 s[12:13], s[0:1], 56")
    a("v_lshrrev_b32 v2, 6, v0")
    a("v_and_b32 v1, 63, v0")
    a("v_readfirstlane_b32 s44, v2")
    a("s_and_b32 s50, s2, 7")
    a("s_lshr_b32 s51, s2, 3")
    a("s_and_b32 s45, s50, 1")
    a("s_lshl_b32 s45, s45, 3")
    a("s_and_b32 s52, s51, 7")
    a("s_add_u32 s45, s45, s52")
    a("s_lshr_b32 s46, s50, 1")
    a("s_lshr_b32 s47, s51, 3")
    a("s_mul_i32 s48, s46, 7")
    a("s_lshl_b32 s52, s47, 1")
    a("s_add_u32 s48, s48, s52")
    a("s_mul_i32 s49, s46, 3")
    a("s_add_u32 s52, s49, s47")
    a("s_add_u32 s53, s52, 16")
    a("s_add_u32 s54, s52, 4")
    a("s_cmp_lt_u32 s52, 8")
    a("s_cselect_b32 s53, s53, s54")
    a("s_add_u32 s54, s49, 2")
    a("s_add_u32 s72, s48, 1")
    a("s_cmp_eq_u32 s47, 3")
    a("s_cselect_b32 s53, s54, s53")
    a("s_cselect_b32 s72, s48, s72")
    a("s_cmp_ge_u32 s44, 4")
    a("s_cbranch_scc1 K1_COMP")
    VX = 4; VA = 8; VQ = 10; VG = 12; T0 = 14; T1 = 15; T2 = 16
    a(f"v_lshrrev_b32 v{T0}, 3, v1")
    a(f"v_and_b32 v{T1}, 7, v1")
    a(f"v_lshrrev_b32 v{T2}, 4, v1")
    a(f"v_xor_b32 v{T2}, v{T1}, v{T2}")
    a(f"v_lshlrev_b32 v{VX}, 10, v{T0}")
    a(f"v_lshl_add_u32 v{VX}, v{T2}, 4, v{VX}")
    a(f"v_add_u32 v{VX+1}, 0x2000, v{VX}")
    a(f"v_xor_b32 v{VX+2}, 64, v{VX}")
    a(f"v_add_u32 v{VX+2}, 0x4000, v{VX+2}")
    a(f"v_add_u32 v{VX+3}, 0x2000, v{VX+2}")
    a("s_lshl_b32 s55, s45, 17")
    a("s_lshl_b32 s56, s44, 15")
    a("s_add_u32 s55, s55, s56")
    a("s_lshl_b32 s56, s44, 12")
    a(f"s_add_u32 s56, s56, {XB}")
    a("s_lshl_b32 s61, s44, 11")
    a("s_movk_i32 s57, 3584")
    a("s_add_u32 s59, s49, 1")
    a("s_cmp_eq_u32 s47, 3")
    a("s_cselect_b32 s57, 3072, s57")
    a("s_cselect_b32 s58, s49, s48")
    a("s_cselect_b32 s59, s59, s48")
    a("s_lshl_b32 s52, s44, 4")
    a("s_mul_i32 s54, s52, s57")
    a("s_lshl_b32 s58, s58, 7")
    a("s_lshl_b32 s59, s59, 7")
    a("s_add_u32 s58, s58, s54")
    a("s_add_u32 s59, s59, s54")
    a("s_lshl_b32 s60, s53, 7")
    a("s_mul_i32 s54, s52, 3072")
    a("s_add_u32 s60, s60, s54")
    a(f"v_bfe_u32 v{T2}, v1, 4, 1")
    a(f"v_xor_b32 v{T1}, v{T1}, v{T2}")
    a(f"v_lshlrev_b32 v{T1}, 4, v{T1}")
    a(f"v_xor_b32 v{T2}, 64, v{T1}")
    a(f"v_mad_u32_u24 v{VA}, v{T0}, s57, v{T1}")
    a(f"v_add_u32 v{T0+3}, 8, v{T0}")
    a(f"v_mad_u32_u24 v{VA+1}, v{T0+3}, s57, v{T2}")
    a("s_movk_i32 s54, 3072")
    a("s_cmp_ge_u32 s53, 16")
    a("s_cselect_b32 s63, 48, 0")
    a(f"v_bfe_u32 v{VG}, v1, 4, 1")
    a(f"v_mul_u32_u24 v{VG}, s63, v{VG}")
    a(f"v_xor_b32 v{VG+1}, v{VG}, v{T2}")
    a(f"v_xor_b32 v{VG}, v{VG}, v{T1}")
    a(f"v_mad_u32_u24 v{VQ}, v{T0}, s54, v{VG}")
    a(f"v_mad_u32_u24 v{VQ+1}, v{T0+3}, s54, v{VG+1}")
    a("s_lshl_b32 s57, s57, 6")
    stamp_init(a)
    a("s_waitcnt lgkmcnt(0)")
    stamp(a, 0)
    srd(a, 24, 4, 0x200000)
    vm = VM()
    def xdma(n):
        c = XCH[n]
        for p in range(4):
            a(f"s_add_u32 m0, s56, {(c % 4)*16384 + p*1024}")
            a(f"buffer_load_dwordx4 v{VX+p}, s[24:27], s55 offen offset:{0} lds"); vm.issue(("c", n))
        if n < 7: a("s_add_u32 s55, s55, 128")
        elif n == 7: a("s_sub_u32 s55, s55, 512")
        elif n < 15: a("s_sub_u32 s55, s55, 128")
    def wdma(n):
        sl = ((32, VA, 58), (36, VA, 59), (40, VQ, 60)) if n < 8 else ((64, VG, 62), (68, VG, 62))
        for u, (sd, v, so) in enumerate(sl):
            for m in range(2):
                a(f"s_add_u32 m0, s61, {WB(n, u) + m*1024}")
                a(f"buffer_load_dwordx4 v{v+m}, s[{sd}:{sd+3}], s{so} offen lds"); vm.issue(("c", n))
        if n < 7:
            a("s_add_u32 s58, s58, s57"); a("s_add_u32 s59, s59, s57"); a("s_add_u32 s60, s60, 196608")
        elif 8 <= n < 15:
            a(f"s_sub_u32 s62, s62, {64*3584}")
    def cdma(n):
        if n < 8 or n >= 12: xdma(n)
        wdma(n)
    xdma(0)
    srd(a, 40, 6, 0x180000)
    srd(a, 32, 8, 0x1c0000)
    srd(a, 36, 10, 0x1c0000)
    a("s_cmp_eq_u32 s47, 3")
    a("s_cbranch_scc0 K1_LQ")
    srd(a, 32, 6, 0x180000)
    srd(a, 36, 6, 0x180000)
    a("K1_LQ:")
    wdma(0)
    for n in range(1, OPT['pro']): cdma(n)
    stamp(a, 1)
    srd(a, 28, 14, WS_SIZE)
    srd(a, 64, 8, 0x1c0000)
    srd(a, 68, 10, 0x1c0000)
    a("s_movk_i32 s54, 3584")
    a(f"v_mad_u32_u24 v{VG}, v{T0}, s54, v{T1}")
    a(f"v_mad_u32_u24 v{VG+1}, v{T0+3}, s54, v{T2}")
    a("s_lshl_b32 s62, s72, 7")
    a("s_mul_i32 s54, s52, 3584")
    a("s_add_u32 s62, s62, s54")
    a(f"s_add_u32 s62, s62, {448*3584}")
    GA = 20; GX = 24; GW = 32
    a(f"v_and_b32 v{GA}, 31, v1")
    a(f"v_lshlrev_b32 v{GA}, 5, v{GA}")
    a(f"v_lshrrev_b32 v{GA+2}, 5, v1")
    a(f"v_lshl_add_u32 v{GA+1}, v{GA+2}, 10, v{GA}")
    a(f"v_lshlrev_b32 v{GA+2}, 2, v{GA+2}")
    a("s_lshl_b32 s73, s46, 2")
    a("s_add_u32 s73, s73, s47")
    a("s_lshl_b32 s73, s73, 3")
    a("s_lshl_b32 s63, s45, 7")
    a("s_add_u32 s73, s73, s63")
    a("s_lshl_b32 s63, s44, 1")
    a("s_add_u32 s73, s73, s63")
    a("s_lshl_b32 s63, s73, 10")
    a("s_lshl_b32 s73, s73, 2")
    a(f"s_add_u32 s73, s73, {hex(WS_G)}")
    for n in range(-1, 15):
        vm.wait(a, ("c", n + 1))
        a("s_barrier")
        if n in (-1, 3, 7, 11): stamp(a, 2 + (n + 1) // 4)
        if n == -1:
            for m in range(OPT['pro'], 4): cdma(m)
        elif n + 4 <= 15: cdma(n + 4)
        if n == 5:
            srd(a, 32, 12, 1024)
            a(f"buffer_load_dwordx4 {vr(GX,4)}, v{GA+1}, s[24:27], s63 offen"); vm.issue()
            a(f"buffer_load_dwordx4 {vr(GX+4,4)}, v{GA+1}, s[24:27], s63 offen offset:16"); vm.issue()
            a(f"buffer_load_dwordx4 {vr(GW,4)}, v{GA}, s[32:35], 0 offen"); vm.issue()
            a(f"buffer_load_dwordx4 {vr(GW+4,4)}, v{GA}, s[32:35], 0 offen offset:16"); vm.issue("g")
        if n == 9:
            a("v_mov_b32 v2, 0")
            vm.wait(a, "g")
            for i in range(8):
                a(f"v_dot2_f32_bf16 v2, v{GX+i}, v{GW+i}, v2")
            for sh in (1, 2, 4, 8):
                a(f"v_add_f32_dpp v2, v2, v2 row_shr:{sh} row_mask:0xf bank_mask:0xf bound_ctrl:0")
            a("v_add_f32_dpp v2, v2, v2 row_bcast:15 row_mask:0xa bank_mask:0xf")
            a("v_cvt_pk_bf16_f32 v2, v2, v2")
            a("v_and_b32 v2, 0xffff0000, v2")
            a("v_mul_f32 v2, 0xbfb8aa3b, v2")
            a("v_exp_f32 v2, v2")
            a("v_add_f32 v2, 1.0, v2")
            a("v_rcp_f32 v2, v2")
            a("v_cvt_pk_bf16_f32 v2, v2, v2")
            a("v_and_b32 v2, 0xffff0000, v2")
            a("s_mov_b32 s74, 0x80000000")
            a("s_mov_b32 s75, 0x80000000")
            a("s_mov_b64 exec, s[74:75]")
            a(f"buffer_store_dword v2, v{GA+2}, s[28:31], s73 offen{SC()}"); vm.issue()
            a("s_mov_b64 exec, -1")
    stamp(a, 6)
    if gen4.STAMP:
        a("s_waitcnt vmcnt(0)")
        stamp(a, 7)
        stamp_out(a, 0)
    a("s_endpgm")
    a("K1_COMP:")
    a("s_setprio 1")
    TA = 12; TB = 13; TD = 14
    a("s_cmp_eq_u32 s44, 7")
    a("s_cbranch_scc1 K1_TX")
    a("s_cmp_eq_u32 s44, 6")
    a("s_cbranch_scc1 K1_TQ")
    a(f"v_bfe_u32 v{TA}, v1, 2, 2")
    a(f"v_and_b32 v{TD}, 3, v1")
    a(f"v_mul_u32_u24 v{TA}, {32*3584}, v{TA}")
    a(f"v_min_u32 v{TD+1}, 2, v{TD}")
    a(f"v_lshl_add_u32 v{TA}, v{TD+1}, 8, v{TA}")
    a(f"v_lshrrev_b32 v{TB}, 2, v1")
    a(f"v_mul_u32_u24 v{TB}, {32*3584}, v{TB}")
    a(f"v_lshlrev_b32 v{TD}, 8, v{TD}")
    a(f"v_add_u32 v{TD}, 128, v{TD}")
    a(f"v_min_u32 v{TD}, 768, v{TD}")
    a(f"v_add_u32 v{TB}, v{TB}, v{TD}")
    a("s_mul_i32 s62, s51, 3584")
    a("s_mul_i32 s54, s46, 896")
    a("s_add_u32 s62, s62, s54")
    a(f"s_mov_b32 s63, {128*3584}")
    a("s_waitcnt lgkmcnt(0)")
    srd(a, 32, 8, 0x1c0000)
    a("s_cmp_eq_u32 s44, 4")
    a("s_cbranch_scc1 K1_TG")
    a("s_mov_b32 s32, s10")
    a("s_mov_b32 s33, s11")
    a("s_branch K1_TG")
    a("K1_TQ:")
    a(f"v_bfe_u32 v{TA}, v1, 3, 2")
    a(f"v_and_b32 v{TB}, 7, v1")
    a(f"v_min_u32 v{TB}, 5, v{TB}")
    a(f"v_add_u32 v{TB}, s49, v{TB}")
    a(f"v_add_u32 v{TD}, 13, v{TB}")
    a(f"v_add_u32 v{TD+1}, 1, v{TB}")
    a(f"v_cmp_gt_u32 vcc, 11, v{TB}")
    a(f"v_cndmask_b32 v{TD}, v{TD+1}, v{TD}, vcc")
    a("s_add_u32 s52, s49, 3")
    a(f"v_cmp_gt_u32 vcc, s52, v{TB}")
    a(f"v_cndmask_b32 v{TB}, v{TD}, v{TB}, vcc")
    a(f"v_mul_u32_u24 v{TA}, {32*3072}, v{TA}")
    a(f"v_lshl_add_u32 v{TA}, v{TB}, 7, v{TA}")
    a(f"v_mov_b32 v{TB}, 0")
    a("s_mul_i32 s62, s51, 3072")
    a(f"s_mov_b32 s63, {128*3072}")
    a("s_waitcnt lgkmcnt(0)")
    srd(a, 32, 6, 0x180000)
    a("s_branch K1_TG")
    a("K1_TX:")
    a(f"v_and_b32 v{TA}, 31, v1")
    a(f"v_lshlrev_b32 v{TA}, 10, v{TA}")
    a(f"v_lshrrev_b32 v{TB}, 5, v1")
    a(f"v_lshl_add_u32 v{TA}, v{TB}, 7, v{TA}")
    a(f"v_mov_b32 v{TB}, 0")
    a("s_and_b32 s62, s50, 1")
    a("s_lshl_b32 s62, s62, 20")
    a("s_lshl_b32 s54, s51, 15")
    a("s_add_u32 s62, s62, s54")
    a("s_movk_i32 s63, 256")
    a("s_waitcnt lgkmcnt(0)")
    srd(a, 32, 4, 0x200000)
    a("K1_TG:")
    a("s_mov_b32 s64, s62")
    def touches(n):
        if not OPT['touch']: return
        for j in range(4):
            if OPT[f'ta{j}'] == n:
                a(f"buffer_load_dword v{TD}, v{TA}, s[32:35], s62 offen")
            if OPT[f'ta{j}'] == n or (OPT[f'ta{j}'] == -9 and n == -1):
                a("s_add_u32 s62, s62, s63")
        if OPT['tb'] == n:
            a(f"buffer_load_dword v{TD}, v{TB}, s[32:35], s64 offen")
    if OPT['tsl']: a(f"s_sleep {OPT['tsl']}")
    touches(-1)
    VT = 2; VH = 3; VV = 4; XA = 5; TR = 7; T0 = 16; T1 = 17; T2 = 18; J = 19; G = 20
    F = [16, 56]; AA = 96; AB = 192
    a("s_and_b32 s55, s44, 1")
    a("s_bfe_u32 s56, s44, 0x10001")
    a(f"v_and_b32 v{J}, 15, v1")
    a(f"v_lshrrev_b32 v{G}, 4, v1")
    a(f"v_and_b32 v{T0}, 8, v1")
    a(f"v_add_u32 v{T0}, v{T0}, v{J}")
    a(f"v_lshrrev_b32 v{T1}, 1, v{J}")
    a(f"v_xor_b32 v{T1}, v{T1}, v{G}")
    a(f"v_lshlrev_b32 v{T1}, 4, v{T1}")
    a(f"v_lshl_add_u32 v{T1}, v{T0}, 7, v{T1}")
    a("s_lshl_b32 s52, s55, 13")
    a(f"s_add_u32 s52, s52, {XB}")
    a(f"v_add_u32 v{XA}, s52, v{T1}")
    a(f"v_xor_b32 v{XA+1}, 64, v{XA}")
    a(f"v_lshlrev_b32 v{T0}, 4, v{T0}")
    a(f"v_lshl_add_u32 v{VH}, v{G}, 9, v{T0}")
    a(f"v_lshrrev_b32 v{T1}, 5, v1")
    a(f"v_mul_u32_u24 v{T1}, {65536-1024}, v{T1}")
    a(f"v_add_u32 v{VT}, v{VH}, v{T1}")
    if OPT['sw']:
        a(f"v_lshrrev_b32 v{T1}, 5, v1")
        a(f"v_mul_u32_u24 v{T1}, {1024-128}, v{T1}")
        a(f"v_sub_u32 v{VH}, v{VH}, v{T1}")
        a(f"v_add_u32 v{VT}, 0x10000, v{VH}")
    a(f"v_lshlrev_b32 v{VV}, 4, v1")
    a(f"v_bfe_u32 v{T2}, v1, 3, 1")
    a(f"v_lshrrev_b32 v{T0}, 2, v{J}")
    a(f"v_lshl_add_u32 v{T0}, v{G}, 3, v{T0}")
    a(f"v_lshlrev_b32 v{T0}, 7, v{T0}")
    a(f"v_and_b32 v{T1}, 2, v1")
    a(f"v_or_b32 v{T1}, v{T1}, v{T2}")
    a(f"v_bfe_u32 v{T2}, v1, 4, 1")
    a(f"v_xor_b32 v{T2}, s56, v{T2}")
    a(f"v_lshl_or_b32 v{T1}, v{T2}, 2, v{T1}")
    a(f"v_lshl_add_u32 v{T0}, v{T1}, 4, v{T0}")
    a(f"v_and_b32 v{T1}, 1, v1")
    a(f"v_lshl_add_u32 v{TR}, v{T1}, 3, v{T0}")
    a(f"v_xor_b32 v{TR+1}, 16, v{TR}")
    a(f"v_add_u32 v{TR+2}, 0x10000, v{TR}")
    a(f"v_add_u32 v{TR+3}, 0x10000, v{TR+1}")
    a("s_lshl_b32 s57, s45, 2")
    a("s_lshl_b32 s52, s55, 1")
    a("s_add_u32 s57, s57, s52")
    a("s_mul_i32 s58, s57, 114688")
    a("s_lshl_b32 s52, s56, 11")
    a("s_add_u32 s58, s58, s52")
    a(f"s_add_u32 s58, s58, {hex(WS_HF)}")
    a("s_lshl_b32 s52, s72, 12")
    a("s_add_u32 s60, s58, s52")
    a("s_add_u32 s61, s60, 114688")
    a("s_lshl_b32 s52, s48, 12")
    a("s_add_u32 s58, s58, s52")
    a("s_add_u32 s59, s58, 114688")
    a("s_lshl_b32 s57, s57, 10")
    a("s_lshl_b32 s52, s56, 17")
    a("s_add_u32 s57, s57, s52")
    a("s_lshl_b32 s52, s53, 18")
    a("s_add_u32 s68, s57, s52")
    a("s_sub_u32 s67, s68, 0x40000")
    a("s_sub_u32 s66, s68, 0x80000")
    stamp_init(a)
    stamp(a, 0)
    srd(a, 28, 14, WS_SIZE)
    a("s_cmp_ge_u32 s53, 16")
    a("s_cbranch_scc1 K1_CV")
    def vsetup():
        a(f"v_lshrrev_b32 v{T0}, 1, v{TR}")
        a(f"v_xor_b32 v{T0}, v{T0}, v{TR}")
        a(f"v_and_b32 v{T0}, 16, v{T0}")
        a(f"v_mul_u32_u24 v{T0}, 3, v{T0}")
        a(f"v_xor_b32 v{TR+2}, v{T0}, v{TR+2}")
        a(f"v_xor_b32 v{TR+3}, 32, v{TR+2}")
        a("s_add_u32 s69, s68, 0x10000")

    def nu(k): return 3 if k < 16 else 2
    def reads(k):
        f = F[k % 2]; n = k // 2; s = k % 2
        xo = (XCH[n] % 4) * 16384
        out = []
        def x(t): out.append((f"ds_read_b128 {vr(f+4*t,4)}, v{XA + s} offset:{xo + (t>>1)*4096 + (t&1)*1024}", ("x", k, t)))
        def w(i):
            u, T = i // 2, i % 2
            wo = WB(n, u) % 65536 + s*4096; tr = TR + (2 if u == 2 else 0)
            out.append((f"ds_read_b64_tr_b16 {vr(f+16+4*i,2)}, v{tr+T} offset:{wo}", None))
            out.append((f"ds_read_b64_tr_b16 {vr(f+18+4*i,2)}, v{tr+T} offset:{wo + 512}", ("w", k, i)))
        x(0); w(0); x(1); x(2); x(3)
        for i in range(1, 2*nu(k)): w(i)
        return out
    def acc(k, i, t, var):
        u, T = i // 2, i % 2
        if k >= 16: return AB + (u*4 + t)*8 + T*4
        if var == "V" and u == 2: return AA + (u*4 + (t>>1)*2 + T)*8 + (t&1)*4
        return AA + (u*4 + t)*8 + T*4
    def mfma(k, i, t, var):
        f = F[k % 2]; ac = vr(acc(k, i, t, var), 4)
        X = vr(f + 4*t, 4); W = vr(f + 16 + 4*i, 4)
        A, B = (X, W) if (var == "V" and i >= 4 and k < 16) else (W, X)
        return f"v_mfma_f32_16x16x32_bf16 {ac}, {A}, {B}, {'0' if k in (0, 16) else ac}"
    def cv4(A): return [f"v_cvt_pk_bf16_f32 v{A+j}, v{A+2*j}, v{A+2*j+1}" for j in range(4)]
    def sw4(A): return [f"v_permlane32_swap_b32 v{A-8+j}, v{A+j}" for j in range(4)]
    def epi_T(u, t):
        A = AA + (u*4 + t)*8
        if OPT['sw']:
            if t % 2 == 0: return cv4(A)
            return cv4(A) + sw4(A) + [f"buffer_store_dwordx4 {vr(A-8,4)}, v{VH}, s[28:31], s{66+u} offen offset:{(t>>1)*1024}{SC()}",
                                      f"buffer_store_dwordx4 {vr(A,4)}, v{VT}, s[28:31], s{66+u} offen offset:{(t>>1)*1024}{SC()}"]
        return cv4(A) + [f"buffer_store_dwordx4 {vr(A,4)}, v{VT}, s[28:31], s{66+u} offen offset:{(t>>1)*1024 + (t&1)*128}{SC()}"]
    def epi_V(q):
        A = AA + (8 + q)*8
        return cv4(A) + [f"buffer_store_dwordx4 {vr(A,4)}, v{VV}, s[28:31], s{68 + (q&1)} offen offset:{(q>>1)*1024}{SC()}"]
    def epi_H(base, sb, t):
        A = base + t*8; U = base + (4 + t)*8
        if OPT['sw']:
            o = [f"v_mul_f32 v{A+j}, v{A+j}, v{U+j}" for j in range(8)] + cv4(A)
            if t % 2 == 0: return o
            return o + sw4(A) + [f"buffer_store_dwordx4 {vr(A-8,4)}, v{VH}, s[28:31], s{sb + (t>>1)} offen{SC()}",
                                 f"buffer_store_dwordx4 {vr(A,4)}, v{VH}, s[28:31], s{sb + (t>>1)} offen offset:1024{SC()}"]
        return [f"v_mul_f32 v{A+j}, v{A+j}, v{U+j}" for j in range(8)] + cv4(A) + \
               [f"buffer_store_dwordx4 {vr(A,4)}, v{VH}, s[28:31], s{sb + (t>>1)} offen offset:{(t&1)*128}{SC()}"]
    def step(lg, k, var, pend, last=False):
        rd = reads(k + 1) if k < 31 else []
        order = [(i, t) for i in range(2*nu(k)) for t in range(4)]
        bud = OPT['epv']; nst = 0
        for n, (i, t) in enumerate(order):
            lg.wait(a, ("x", k, t), ("w", k, i))
            a(mfma(k, i, t, var))
            if k % 2 == 1 and n == 1 and k < 31:
                lg.wait_all(a)
                a("s_barrier")
                if k in (7, 15, 23, 29): stamp(a, {7: 2, 15: 3, 23: 4, 29: 5}[k])
                touches(k // 2)
            slots = 2
            if (k % 2 == 0 or n >= 1) and rd:
                s, tag = rd.pop(0); a(s); lg.issue(tag); slots -= 1
            while slots > 0 and pend and bud > 0 and n >= 2:
                if pend[0].startswith("buffer_store") and OPT['stn']:
                    if k % 2 == 1 or n < OPT['stn'] or nst >= OPT['spc']: break
                    nst += 1
                a(pend.pop(0)); slots -= 1; bud -= 1
        assert not rd
    def passB(lg, var, kind):
        lg = copy.deepcopy(lg)
        pend = []
        if kind == "Q":
            for u in range(3):
                for t in range(4): pend += epi_T(u, t)
        else:
            if OPT['lateq']:
                for t in range(4): pend += epi_H(AA, 58, t)
            for t in range(4): pend += epi_V(t) if var == "V" else epi_T(2, t)
            if not OPT['lateq']:
                for t in range(4): pend += epi_H(AA, 58, t)
        if OPT['lateq']: pend = ["s_nop 0"] * (15*OPT['epv'] - len(pend)) + pend
        for k in range(16, 31): step(lg, k, var, pend)
        assert not pend
        k = 31; pend = []
        for t in range(4):
            for n, i in enumerate((0, 2, 1, 3)):
                lg.wait(a, ("x", k, t), ("w", k, i))
                a(mfma(k, i, t, var))
                if n == 1 and t > 0: pend += epi_H(AB, 60, t - 1)
                for _ in range(3):
                    if pend: a(pend.pop(0))
        pend += epi_H(AB, 60, 3)
        for s in pend: a(s)
        if gen4.STAMP:
            stamp(a, 6)
            a("s_waitcnt vmcnt(0)")
            stamp(a, 7)
            stamp_out(a, 0)
        a("s_endpgm")
    for var in "TV":
        if var == "V":
            a("K1_CV:"); vsetup()
        lg = LG()
        a("s_barrier")
        stamp(a, 1)
        for s, tag in reads(0): a(s); lg.issue(tag)
        for k in range(16): step(lg, k, var, [])
        if var == "T":
            a("s_cmp_eq_u32 s47, 3")
            a("s_cbranch_scc1 K1_FQ")
            passB(lg, "T", "H")
            a("K1_FQ:")
            passB(lg, "T", "Q")
        else:
            passB(lg, "V", "H")
    a("K1_END:")
    a("s_endpgm")
    return N, 256, (256, 512, 163840)

def build(path):
    a = Asm()
    ks = [gen_p1(a), gen4.gen_k2(a), gen4.gen_k3(a)]
    out = []
    for (n, v, (g, b, l)) in ks:
        out.append(f"; @launch kernel={n} grid=({g},1,1) block=({b},1,1) lds={l}")
    out.append('.amdgcn_target "amdgcn-amd-amdhsa--gfx950"')
    out.append(".text")
    out.append(a.text())
    out.append('.section .rodata,"a"')
    for (n, v, _) in ks:
        out.append(kd(n, v))
    open(path, "w").write("\n".join(out))

if __name__ == "__main__":
    path = sys.argv[1]
    args = sys.argv[2:]
    gen4.STAMP = "stamp" in args
    OPT['qs'] = 1
    for x in args:
        if "=" in x:
            k, v = x.split("="); OPT[k] = int(v)
    build(path)
```
